```python
import torch

def _softmax(x, axis=-1):
    return torch.softmax(x, dim=axis)
def _gelu(x):
    return torch.nn.functional.gelu(x, approximate="tanh")
def _silu(x):
    return torch.nn.functional.silu(x)
def _sigmoid(x):
    return torch.sigmoid(x)
def _layernorm(x, axis=-1, eps=1e-5):
    m = x.mean(dim=axis, keepdim=True)
    v = x.var(dim=axis, keepdim=True, unbiased=False)
    return (x - m) / torch.sqrt(v + eps)
def _scatter_add(tgt, idx, src, axis=0):
    return tgt.clone().index_add_(axis, idx, src)
def _segment_sum(src, seg, n):
    out = torch.zeros((n,) + src.shape[1:], dtype=src.dtype)
    return out.index_add_(0, seg, src)
def _pad(x, pw):
    flat = tuple(v for pair in reversed(pw) for v in pair)
    return torch.nn.functional.pad(x, flat)

kernel_name = 'gated_mix__compressed_kv_cla__linear_attn_block__prompt'

def setup_inputs():

    _w = (lambda a: (lambda t: t.to(torch.bfloat16) if t.is_floating_point() else t)(torch.as_tensor(a)))
    def _A_setup():
        B, H, Sq, Sk, D, M = 1, 32, 2048, 2048, 128, 512
        Dc = 4 * D
        return {
            "x": _w((lambda *s: torch.randn(*s, dtype=torch.bfloat16) * 0.05)(B, Sq, M)),
            "c_kv": _w((lambda *s: torch.randn(*s, dtype=torch.bfloat16) * 1.6)(B, Sk, Dc)),
            "w_q": _w((lambda *s: torch.randn(*s, dtype=torch.bfloat16) * 3.2)(M, H, D) * (M ** -0.5)),
            "w_uk": _w((lambda *s: torch.randn(*s, dtype=torch.bfloat16) * 3.2)(Dc, H, D) * (Dc ** -0.5)),
            "w_uv": _w((lambda *s: torch.randn(*s, dtype=torch.bfloat16) * 1.6)(Dc, H, D) * (Dc ** -0.5)),
            "w_o": _w((lambda *s: torch.randn(*s, dtype=torch.bfloat16) * 1.6)(H, D, M) * ((H * D) ** -0.5)),
        }
    _A_in = _A_setup()

    def _B_setup():
        B, S, D = 1, 2048, 512
        return {
            "x": _w((lambda *s: torch.randn(*s, dtype=torch.bfloat16) * 0.05)(B, S, D)),
            "wqkv": _w((lambda *s: torch.randn(*s, dtype=torch.bfloat16) * 3.2)(D, 3 * D)),
            "wo": _w((lambda *s: torch.randn(*s, dtype=torch.bfloat16) * 0.4)(D, D)),
        }
    _B_in = _B_setup()

    return {
        "A_x": _A_in["x"],
        "A_c_kv": _A_in["c_kv"],
        "A_w_q": _A_in["w_q"],
        "A_w_uk": _A_in["w_uk"],
        "A_w_uv": _A_in["w_uv"],
        "A_w_o": _A_in["w_o"],
        "B_x": _B_in["x"],
        "B_wqkv": _B_in["wqkv"],
        "B_wo": _B_in["wo"],
        "gate_w": _w((lambda *s: torch.randn(*s, dtype=torch.bfloat16) * 0.05)(512) * 16.0),
    }

def reference(A_x, A_c_kv, A_w_q, A_w_uk, A_w_uv, A_w_o, B_x, B_wqkv, B_wo, gate_w):
    def _A_ref(x, c_kv, w_q, w_uk, w_uv, w_o):
        B, Sq, M = x.shape[0], x.shape[1], x.shape[2]
        Sk = c_kv.shape[1]
        H, D = w_q.shape[1], w_q.shape[2]
        q = torch.einsum("bqm,mhd->bhqd", x, w_q)
        k = torch.einsum("bkc,chd->bhkd", c_kv, w_uk)
        v = torch.einsum("bkc,chd->bhkd", c_kv, w_uv)
        scores = torch.einsum("bhqd,bhkd->bhqk", q, k) * (D ** -0.5)
        off = Sk - Sq
        qi = torch.arange(Sq)[:, None]
        kj = torch.arange(Sk)[None, :]
        cmask = kj <= (qi + off)
        scores = torch.where(cmask[None, None], scores, -1e9)
        p = _softmax(scores, axis=-1)
        ctx = torch.einsum("bhqk,bhkd->bhqd", p, v)
        return torch.einsum("bhqd,hdm->bqm", ctx, w_o)

    def _B_ref(x, wqkv, wo):
        B, S, D = x.shape
        H = 32; Dh = D // H
        qkv = (lambda x, *d: x.permute(*d))((x @ wqkv).reshape(B, S, 3, H, Dh), 2, 0, 3, 1, 4)
        q, k, v = qkv[0], qkv[1], qkv[2]
        phi = lambda t: torch.where(t > 0, t + 1, torch.exp(t)) + 1e-6
        pq, pk = phi(q), phi(k)
        kv = torch.einsum("bhsd,bhse->bhde", pk, v)
        z = torch.einsum("bhsd->bhd", pk)
        num = torch.einsum("bhqd,bhde->bhqe", pq, kv)
        den = torch.einsum("bhqd,bhd->bhq", pq, z)[..., None] + 1e-6
        o = num / den
        return (lambda x, *d: x.permute(*d))(o, 0, 2, 1, 3).reshape(B, S, D) @ wo

    x = A_x
    g = _sigmoid((x * gate_w).sum(-1, keepdims=True))
    a = _A_ref(x, A_c_kv, A_w_q, A_w_uk, A_w_uv, A_w_o)
    b = _B_ref(x, B_wqkv, B_wo)
    return g * a + (1 - g) * b
```

```python
import re

def _regs(tok):
    tok = tok.strip()
    neg = tok.startswith('-')
    if neg: tok = tok[1:]
    m = re.fullmatch(r'abs\((.*)\)', tok) or re.fullmatch(r'\|(.*)\|', tok)
    if m: tok = m.group(1)
    m = re.fullmatch(r'([vsa])(\d+)', tok)
    if m: return [(m.group(1), int(m.group(2)))]
    m = re.fullmatch(r'([vsa])\[(\d+):(\d+)\]', tok)
    if m: return [(m.group(1), i) for i in range(int(m.group(2)), int(m.group(3)) + 1)]
    if tok in ('vcc', 'exec', 'm0', 'scc'): return [('x', tok)]
    if tok in ('vcc_lo', 'vcc_hi'): return [('x', 'vcc')]
    if tok in ('exec_lo', 'exec_hi'): return [('x', 'exec')]
    return []

TRANS = ('v_exp_f32', 'v_log_f32', 'v_rcp_f32', 'v_rsq_f32', 'v_sqrt_f32', 'v_sin_f32', 'v_cos_f32')

class Ins:
    __slots__ = ('text', 'op', 'kind', 'w', 'r', 'states', 'mf', 'srcc', 'ab', 'tag', 'wide_store', 'dpp')
    def __init__(self, text):
        self.text = text
        t = text.split(';')[0].strip()
        self.tag = None; self.mf = 0; self.srcc = set(); self.ab = set(); self.wide_store = False; self.dpp = False
        self.w = set(); self.r = set(); self.states = 1
        if t.endswith(':') or t == '' or t.startswith('.'):
            self.op = ''; self.kind = 'label' if t.endswith(':') else 'none'; self.states = 0
            return
        parts = t.split(None, 1)
        op = parts[0]; self.op = op
        rest = parts[1] if len(parts) > 1 else ''
        ops = []; cur = ''; depth = 0
        for ch in rest:
            if ch == '[': depth += 1
            if ch == ']': depth -= 1
            if ch == ',' and depth == 0:
                ops.append(cur.strip()); cur = ''
            else: cur += ch
        if cur.strip(): ops.append(cur.strip())
        mods = ''
        if ops:
            sp = ops[-1].split(None, 1)
            ops[-1] = sp[0]
            if len(sp) > 1: mods = sp[1]
        R = lambda i: set(_regs(ops[i])) if i < len(ops) else set()
        allr = lambda a: set().union(*[R(i) for i in range(a, len(ops))]) if len(ops) > a else set()
        if op.startswith('v_mfma'):
            self.kind = 'mfma'
            self.mf = 8 if '32x32x16' in op else (4 if '16x16x32' in op else 2)
            self.w = R(0); self.ab = R(1) | R(2); self.srcc = R(3); self.r = self.ab | self.srcc
        elif op.startswith('v_'):
            self.kind = 'trans' if op.replace('_e32', '').replace('_e64', '') in TRANS else 'valu'
            if 'dpp' in op or 'quad_perm' in mods or 'row_' in mods: self.dpp = True
            if op.startswith('v_cmp'):
                self.w = R(0); self.r = allr(1)
            elif op.startswith('v_permlane'):
                self.w = R(0) | R(1); self.r = R(0) | R(1)
            elif op.startswith(('v_add_co', 'v_sub_co', 'v_addc_co', 'v_subb_co')):
                self.w = R(0) | R(1); self.r = allr(2)
            else:
                self.w = R(0); self.r = allr(1)
                if op.startswith(('v_fmac', 'v_dot2c', 'v_pk_fmac', 'v_mac')): self.r |= R(0)
                if op.startswith('v_cndmask') and len(ops) == 3: self.r.add(('x', 'vcc'))
        elif op.startswith('ds_'):
            if op.startswith(('ds_read', 'ds_bpermute', 'ds_permute', 'ds_swizzle')):
                self.kind = 'ds_r'; self.w = R(0); self.r = allr(1)
            else:
                self.kind = 'ds_w'; self.r = allr(0)
        elif op.startswith(('buffer_', 'global_')):
            if 'lds' in mods.split() or '_lds_' in op:
                self.kind = 'dma'; self.r = allr(0) | {('x', 'm0')}
            elif '_load' in op:
                self.kind = 'vld'; self.w = R(0); self.r = allr(1)
            else:
                self.kind = 'vst'; self.r = allr(0)
                if 'x4' in op or 'x3' in op:
                    self.wide_store = True
                    self.ab = R(0) if op.startswith('buffer_') else R(1)
        elif op == 's_nop':
            self.kind = 'nop'; self.states = int(ops[0], 0) + 1
        elif op in ('s_waitcnt', 's_barrier', 's_setprio', 's_endpgm', 's_sleep'):
            self.kind = 'ctl'
        elif op.startswith(('s_branch', 's_cbranch', 's_setpc')):
            self.kind = 'branch'
        elif op.startswith('s_load') or op.startswith('s_buffer_load') or op.startswith('s_mem'):
            self.kind = 'smem'; self.w = R(0); self.r = allr(1)
        elif op.startswith('s_'):
            self.kind = 'salu'
            if op.startswith(('s_cmp', 's_bitcmp')):
                self.r = allr(0)
            else:
                self.w = R(0); self.r = allr(1)
                if 'saveexec' in op: self.w.add(('x', 'exec'))
        else:
            raise ValueError('unknown op ' + text)

class Asm:
    def __init__(self):
        self.ins = []
    def __call__(self, text, tag=None):
        for line in text.strip('\n').split('\n'):
            i = Ins(line.strip()); i.tag = tag
            self.ins.append(i)
    def add(self, ins_list):
        self.ins.extend(ins_list)
    def text(self):
        out = []
        for i in self.ins:
            if i.kind in ('label', 'none'): out.append(i.text)
            else: out.append('    ' + i.text)
        return '\n'.join(out) + '\n'

def I(text):
    return Ins(text)

def check_hazards(ins, name=''):
    errs = []
    hist = []
    pos = 0
    MF_RAW = {8: 12, 4: 8, 2: 5}
    MF_OVL = {8: 10, 4: 6, 2: 4}
    MF_WAR = {8: 7, 4: 3, 2: 1}
    for idx, c in enumerate(ins):
        if c.kind in ('label', 'none'): continue
        for (p, ppos) in reversed(hist):
            d = pos - ppos - p.states
            if d >= 20: break
            need = 0; why = ''
            pv = p.kind in ('valu', 'trans')
            cv = c.kind in ('valu', 'trans')
            vw = {x for x in p.w if x[0] in 'va'}
            sw = {x for x in p.w if x[0] in 'sx'}
            if pv and c.kind == 'mfma' and (vw & c.r): need, why = 2, 'valu->mfma'
            if p.kind == 'mfma':
                if c.kind == 'mfma':
                    if p.w & c.ab: need, why = MF_RAW[p.mf], 'mfma D->AB'
                    elif p.w & c.srcc:
                        if p.w == c.srcc and p.mf == c.mf: need = 2 if p.mf == 2 else 0
                        else: need, why = MF_OVL[p.mf], 'mfma D->C overlap'
                    elif p.w & c.w: need, why = MF_OVL[p.mf], 'mfma D WAW (conservative)'
                elif cv or c.kind in ('ds_r', 'ds_w', 'vld', 'vst', 'dma'):
                    if p.w & (c.r | c.w): need, why = MF_RAW[p.mf], 'mfma D->valu/mem'
                    elif cv and (p.srcc & c.w): need, why = MF_WAR[p.mf], 'mfma C WAR'
            if p.kind == 'trans' and c.kind == 'valu' and (vw & c.r): need, why = max(need, 1), 'trans->valu'
            if pv and sw:
                if cv and (sw & c.r): need, why = max(need, 2), 'valu sgpr->valu'
                if c.kind in ('vld', 'vst', 'dma') and (sw & c.r): need, why = max(need, 5), 'valu sgpr->vmem'
            if pv and c.op.startswith(('v_readfirstlane', 'v_readlane')) and (vw & c.r): need, why = max(need, 1), 'valu->readlane'
            if pv and c.op.startswith('v_permlane') and (vw & c.r): need, why = max(need, 2), 'valu->permlane'
            if pv and c.dpp and (vw & c.r): need, why = max(need, 2), 'valu->dpp'
            if p.kind == 'salu' and ('x', 'm0') in p.w and c.kind == 'dma': need, why = max(need, 1), 'm0->dma'
            if p.wide_store and (p.ab & c.w) and c.kind != 'mfma': need, why = max(need, 2), 'store data WAR'
            if p.wide_store and (p.ab & c.w) and c.kind == 'mfma': need, why = max(need, 2), 'store data WAR(mfma)'
            if d < need:
                errs.append(f'{name}: [{idx}] "{c.text}" needs {need} after "{p.text}" has {d} ({why})')
        hist.append((c, pos)); pos += c.states
        if len(hist) > 40: hist.pop(0)
        if c.op in ('s_branch', 's_endpgm', 's_setpc_b64'): hist = []
    return errs

class LgkmTracker:
    def __init__(self):
        self.q = []
    def issue(self, tag):
        self.q.append(tag)
    def wait_for(self, tags):
        if isinstance(tags, str): tags = [tags]
        last = -1
        for i, t in enumerate(self.q):
            if t in tags: last = i
        if last < 0: return None
        n = len(self.q) - 1 - last
        self.q = self.q[last + 1:]
        assert n <= 15, n
        return f's_waitcnt lgkmcnt({n})'
    def drain(self):
        self.q = []
        return 's_waitcnt lgkmcnt(0)'

def vr(a, n=1):
    return f'v{a}' if n == 1 else f'v[{a}:{a+n-1}]'
def sr(a, n=1):
    return f's{a}' if n == 1 else f's[{a}:{a+n-1}]'

class Pseudo(Ins):
    def __init__(self, what, tag):
        Ins.__init__(self, '; pseudo')
        self.kind = what; self.tag = tag; self.states = 0

def auto_waits(ins, lg=None, vm=None):
    lg = list(lg or []); vm = list(vm or [])
    out = []
    def lgwait(last):
        nonlocal lg
        if any(x.kind == 'smem' for x in lg[:last + 1]) :
            out.append(Ins('s_waitcnt lgkmcnt(0)')); lg = []
            return
        rest = lg[last + 1:]
        n = sum(1 for x in rest if x.kind != 'smem')
        assert n <= 15, ('lgkm overflow', n)
        out.append(Ins(f's_waitcnt lgkmcnt({n})')); lg = rest
    def vmwait(last):
        nonlocal vm
        n = len(vm) - 1 - last
        assert n <= 63
        out.append(Ins(f's_waitcnt vmcnt({n})')); vm = vm[last + 1:]
    for c in ins:
        if c.kind == 'WAITVM':
            last = max([i for i, x in enumerate(vm) if x.tag == c.tag], default=-1)
            if last >= 0: vmwait(last)
            continue
        if c.kind == 'WAITLG':
            last = max([i for i, x in enumerate(lg) if (c.tag is None or x.tag == c.tag)], default=-1)
            if last >= 0: lgwait(last)
            continue
        if c.op == 's_waitcnt':
            m = re.search(r'lgkmcnt\((\d+)\)', c.text)
            if m:
                n = int(m.group(1))
                if n == 0: lg = []
                else:
                    keep = []; cnt = 0
                    for x in reversed(lg):
                        if x.kind == 'smem': keep.append(x)
                        elif cnt < n: keep.append(x); cnt += 1
                    lg = list(reversed(keep))
            m = re.search(r'vmcnt\((\d+)\)', c.text)
            if m:
                n = int(m.group(1)); vm = vm[len(vm) - n:] if n > 0 else []
            out.append(c); continue
        touch = c.r | c.w
        last = max([i for i, x in enumerate(lg) if x.w & touch], default=-1)
        if last >= 0: lgwait(last)
        last = max([i for i, x in enumerate(vm) if x.w & touch], default=-1)
        if last >= 0: vmwait(last)
        out.append(c)
        if c.kind in ('ds_r', 'ds_w', 'smem'):
            lg.append(c)
            if sum(1 for x in lg if x.kind != 'smem') > 15:
                raise AssertionError('more than 15 LDS ops outstanding at ' + c.text)
        if c.kind in ('vld', 'vst', 'dma'):
            vm.append(c)
            assert len(vm) <= 63
    return out, lg, vm

def interleave(main, fillers, start=0, end=None):
    n = len(main)
    if end is None: end = n
    out = []
    nf = len(fillers); span = end - start
    k = 0
    for s in range(n):
        out.extend(main[s])
        if start <= s < end:
            tgt = ((s - start + 1) * nf + span - 1) // span
            while k < tgt:
                f = fillers[k]; k += 1
                if isinstance(f, list): out.extend(f)
                else: out.append(f)
    assert k == nf
    return out

import os
STAMP = bool(os.environ.get('STAMP'))
DBG_BASE = 98 << 20
def stamp_init(a, vreg, scnt):
    if not STAMP: return
    a(f'v_mov_b32 v{vreg}, 0\ns_mov_b32 s{scnt}, 0')
def stamp(a, vreg, scnt, st):
    if not STAMP: return
    a(f's_memtime s[{st}:{st+1}]\ns_mov_b32 m0, s{scnt}\ns_waitcnt lgkmcnt(0)\nv_writelane_b32 v{vreg}, s{st}, m0\ns_add_u32 s{scnt}, s{scnt}, 1')
def stamp_store(a, vreg, vtmp, vlane, srd, swave, st, kidx):
    if not STAMP: return
    a(f'''s_lshl_b32 s{st}, s2, 3
s_add_u32 s{st}, s{st}, s{swave}
s_lshl_b32 s{st}, s{st}, 8
s_add_u32 s{st}, s{st}, {DBG_BASE + kidx * (1 << 19)}
v_lshlrev_b32 v{vtmp}, 2, v{vlane}
buffer_store_dword v{vreg}, v{vtmp}, s[{srd}:{srd+3}], s{st} offen''')

def stamp_rt(a, vreg, lane, st):
    if not STAMP: return
    a(f's_memrealtime s[{st}:{st+1}]\ns_waitcnt lgkmcnt(0)\nv_writelane_b32 v{vreg}, s{st}, {lane}')
```

```python
from core import *
import os
from layout import *

ST_POLICY = os.environ.get('K1_ST', '')

def k1_table():
    def K(g): h, hf = g >> 1, g & 1; return (1 | 256, h * 256 + hf * 128, 0, KV_BASE + h * MB + hf * 4096)
    def V(g): h, hf = g >> 1, g & 1; return (2 | 4 | 256, h * 256 + hf * 128, 0, KV_BASE + h * MB + 16384 + hf * 4096)
    def Q(g): h, hf = g >> 1, g & 1; return (0 | 16 | 256, h * 256 + hf * 128, 0, QP_BASE + h * MB + hf * 4096)
    def Bq(g):
        h = 4 * g; return (3 | 32 | 256, h * 32, 0, QP_BASE + (h >> 3) * MB + 16384 + (h & 7) * 1024)
    def Bkv(g):
        h = 2 * g; return (3 | 4 | 48 | 256, 1024 + h * 32, 1024 - 64, P_BASE + h * 2048)
    slots = []
    for j in range(9): slots.append([K(7 * j + i) for i in range(7)])
    slots.append([V(i) for i in range(6)] + [K(63)])
    v = 6
    for j in range(9):
        n = 7 if j < 4 else 6
        slots.append([V(v + i) for i in range(n)]); v += n
    assert v == 64 and len(slots) == 19
    q = 0
    B = [Bq(i) for i in range(8)] + [Bkv(i) for i in range(16)]
    for j in range(12):
        s = [Q(q), Q(q + 1), B[2 * j], Q(q + 2), B[2 * j + 1], Q(q + 3), Q(q + 4)]; q += 5
        slots.append(s)
    s = [Q(q + i) for i in range(4)]; q += 4
    s[0] = (s[0][0] | 512,) + s[0][1:]
    slots.append(s)
    assert q == 64 and len(slots) == 32
    words = []
    for s in slots:
        s = s + [(0, 0, 0, 0)] * (8 - len(s))
        for e in s: words += list(e)
    return words

S_X, S_CKV, S_WQ, S_WUK, S_WUV, S_WQKV, S_GATE, S_WS = 4, 6, 8, 10, 12, 18, 22, 28
SRD_A, SRD_W, SRD_WS, SRD_G = 32, 36, 40, 44
S_D = 48
S_RB, S_SLOT, S_WAVE, S_STRIDE, S_SOFF, S_STEP, S_M0, S_T0, S_T1, S_SCALE, S_OUT, S_AOFF = 80, 81, 82, 83, 84, 85, 86, 87, 88, 89, 90, 91
S_MLO = 92
S_PFLAG, S_POUT, S_GFLAG, S_PREVF, S_L2E, S_EPS = 94, 95, 96, 97, 98, 99
V_LANE, V_ROW, V_C16, V_HI, V_W, V_AE, V_AO, V_ST = 1, 2, 3, 4, 5, 6, 7, 8
V_TRE, V_TRO = 9, 11
V_AR = 13
V_SCA, V_SCB, V_RED = 17, 18, 19
V_ONES = 20
V_T = 24
V_WB = 40
V_X, V_Y, V_A = 64, 96, 128
STG_E, STG_O, SCR = 96 * 1024, 0, 64 * 1024

def mfma(acc, wfrag, afrag, ntype, first):
    c = '0' if first else vr(acc, 16)
    if ntype: return I(f'v_mfma_f32_32x32x16_bf16 {vr(acc,16)}, {vr(afrag,4)}, {vr(wfrag,4)}, {c}')
    return I(f'v_mfma_f32_32x32x16_bf16 {vr(acc,16)}, {vr(wfrag,4)}, {vr(afrag,4)}, {c}')

def setup_next_w(d):
    return [I(x) for x in f'''s_and_b32 s{S_T0}, s{d}, 3
s_cmp_eq_u32 s{S_T0}, 1
s_cselect_b64 s[{SRD_W}:{SRD_W+1}], s[{S_WUK}:{S_WUK+1}], s[{S_WQ}:{S_WQ+1}]
s_cmp_eq_u32 s{S_T0}, 2
s_cselect_b64 s[{SRD_W}:{SRD_W+1}], s[{S_WUV}:{S_WUV+1}], s[{SRD_W}:{SRD_W+1}]
s_cmp_eq_u32 s{S_T0}, 3
s_cselect_b64 s[{SRD_W}:{SRD_W+1}], s[{S_WQKV}:{S_WQKV+1}], s[{SRD_W}:{SRD_W+1}]
s_cselect_b32 s{S_STRIDE}, 3, 8
s_lshl_b32 s{S_STRIDE}, s{S_STRIDE}, 10
s_lshl_b32 s{SRD_W+2}, s{S_STRIDE}, 9
s_bitcmp1_b32 s{d}, 8
s_cselect_b32 s{SRD_W+2}, s{SRD_W+2}, 0
s_lshl_b32 s{S_STEP}, s{S_STRIDE}, 3
s_mul_i32 s{S_SOFF}, s{S_STEP}, s{S_WAVE}
s_lshl_b32 s{S_SOFF}, s{S_SOFF}, 3
s_add_u32 s{S_SOFF}, s{S_SOFF}, s{d+1}
v_mad_u32_u24 v{V_W}, v{V_HI}, s{d+2}, v{V_C16}
v_mad_u32_u24 v{V_W}, v{V_ROW}, s{S_STRIDE}, v{V_W}'''.split('\n')]

def dma_w_bundles(stage):
    out = []
    for i in range(8):
        b = []
        if i == 0:
            b.append(I(f's_lshl_b32 s{S_M0}, s{S_WAVE}, 13'))
            b.append(I(f's_add_u32 m0, s{S_M0}, {stage}'))
        else:
            b.append(I(f's_add_u32 m0, m0, 1024'))
            b.append(I(f's_add_u32 s{S_SOFF}, s{S_SOFF}, s{S_STEP}'))
        if i == 0: b.append(I('s_nop 0'))
        d = I(f'buffer_load_dwordx4 v{V_W}, s[{SRD_W}:{SRD_W+3}], s{S_SOFF} offen lds'); d.tag = 'wnext'
        b.append(d)
        out.append(b)
    return out

def stores4(z):
    return [I(f'buffer_store_dwordx4 {vr(z + (q >> 1) * 16 + (q & 1) * 4, 4)}, v{V_ST}, s[{SRD_WS}:{SRD_WS+3}], s{S_OUT} offen offset:{q*1024} {ST_POLICY}') for q in range(4)]

def epi_e1(z):
    f = []
    st = stores4(z)
    for t in range(2):
        for i in range(8):
            a = z + 16 * t + 2 * i
            f.append(I(f'v_mul_f32 v{a}, s{S_SCALE}, v{a}'))
            f.append(I(f'v_mul_f32 v{a+1}, s{S_SCALE}, v{a+1}'))
            f.append(I(f'v_cvt_pk_bf16_f32 v{z+16*t+i}, v{a}, v{a+1}'))
            if i == 3: f.append(st[2 * t])
        f.append(st[2 * t + 1])
    return f

def phi(a, t):
    return [I(f'v_mul_f32 v{t}, s{S_L2E}, v{a}'),
            I(f'v_max_f32 v{a}, 0, v{a}'),
            I(f'v_exp_f32 v{t}, v{t} clamp'),
            I(f'v_add_f32 v{a}, s{S_EPS}, v{a}'),
            I(f'v_add_f32 v{a}, v{t}, v{a}')]

def epi_bq(z):
    f = []
    st = stores4(z)
    for t in range(2):
        for i in range(8):
            a = z + 16 * t + 2 * i
            f += phi(a, V_T) + phi(a + 1, V_T + 1)
            f.append(I(f'v_cvt_pk_bf16_f32 v{z+16*t+i}, v{a}, v{a+1}'))
            if i == 3: f.append(st[2 * t])
        f.append(st[2 * t + 1])
    return f

def epi_bkv(z):
    f = []
    for i in range(8):
        a = z + 16 + 2 * i
        f.append(I(f'v_cvt_pk_bf16_f32 v{V_T+8+i}, v{a}, v{a+1}'))
    for i in range(8):
        a = z + 2 * i
        f += phi(a, z + 16) + phi(a + 1, z + 17)
        f.append(I(f'v_cvt_pk_bf16_f32 v{V_T+i}, v{a}, v{a+1}'))
    f.append(I('s_nop 1'))
    f.append(I(f'v_mfma_f32_32x32x16_bf16 {vr(z,16)}, {vr(V_T,4)}, {vr(V_T+8,4)}, 0'))
    f.append(I(f'v_mfma_f32_32x32x16_bf16 {vr(z+16,16)}, {vr(V_T,4)}, {vr(V_ONES,4)}, 0'))
    f.append(I(f'v_mfma_f32_32x32x16_bf16 {vr(z,16)}, {vr(V_T+4,4)}, {vr(V_T+12,4)}, {vr(z,16)}'))
    f.append(I(f'v_mfma_f32_32x32x16_bf16 {vr(z+16,16)}, {vr(V_T+4,4)}, {vr(V_ONES,4)}, {vr(z+16,16)}'))
    f.append(I('s_nop 7')); f.append(I('s_nop 3'))
    for i in range(8):
        f.append(I(f'v_cndmask_b32 v{V_T+i}, v{z+16+i}, v{z+i}, s[{S_MLO}:{S_MLO+1}]'))
    for i in range(8):
        f.append(I(f'v_cndmask_b32 v{V_T+8+i}, v{z+8+i}, v{z+24+i}, s[{S_MLO}:{S_MLO+1}]'))
    f.append(I(f'ds_write_b128 v{V_SCA}, {vr(V_T,4)}'))
    f.append(I(f'ds_write_b128 v{V_SCA}, {vr(V_T+4,4)} offset:16'))
    f.append(I(f'ds_write_b128 v{V_SCB}, {vr(V_T+8,4)}'))
    f.append(I(f'ds_write_b128 v{V_SCB}, {vr(V_T+12,4)} offset:16'))
    f.append(I(f's_mov_b32 s{S_PFLAG}, 1'))
    f.append(I(f's_mov_b32 s{S_POUT}, s{S_OUT}'))
    return f

def tr_reads(buf, base, off):
    return [I(f'ds_read_b64_tr_b16 {vr(buf + 4*t + 2*j, 2)}, v{base+t} offset:{off + j*512}') for t in range(2) for j in range(2)]

def body(ntype, parity, epi):
    acc, prev = (V_X, V_Y) if parity == 0 else (V_Y, V_X)
    trb = V_TRE if parity == 0 else V_TRO
    nstage = STG_O if parity == 0 else STG_E
    pre = tr_reads(V_WB, trb, 0) + tr_reads(V_WB + 8, trb, 2048)
    slots = []
    for ks in range(32):
        buf = V_WB + 8 * (ks % 3)
        s0 = []
        if ks + 2 < 32: s0 += tr_reads(V_WB + 8 * ((ks + 2) % 3), trb, (ks + 2) * 2048)
        s0.append(mfma(acc, buf, V_A + 4 * ks, ntype, ks == 0))
        slots.append(s0)
        slots.append([mfma(acc + 16, buf + 4, V_A + 4 * ks, ntype, ks == 0)])
    fill = {'e1': epi_e1, 'bq': epi_bq, 'bkv': epi_bkv}[epi](prev)
    dm = dma_w_bundles(nstage)
    seq = interleave(slots, dm, 0, 8)
    slots2 = []
    k = 0
    for s in range(64):
        x = list(slots[s])
        if s < 8: x += dm[s]
        slots2.append(x)
    if os.environ.get('K1_NOFILL'): fill = []
    if os.environ.get('K1_NODMA'): slots2 = slots
    seq = pre + interleave(slots2, fill, 4, 60)
    if os.environ.get('K1_NOREAD'): seq = [x for x in seq if x.kind != 'ds_r']
    if STAMP:
        t = Asm(); stamp(t, 0, 100, 30); seq += t.ins
    seq.append(Pseudo('WAITVM', 'wnext'))
    seq.append(Pseudo('WAITLG', None))
    seq, lg, vm = auto_waits(seq)
    return seq

def pass1(ntype):
    seq = []
    def chunk_dma(e):
        st = (e % 3) * 49152
        o = []
        o.append(I(f's_lshl_b32 s{S_M0}, s{S_WAVE}, 12'))
        for i in range(4):
            if i == 0: o.append(I(f's_add_u32 m0, s{S_M0}, {st}'))
            else: o.append(I(f's_add_u32 m0, m0, 1024'))
            o.append(I(f's_add_u32 s{S_T0}, s{S_AOFF}, {i*8192 + e*128}'))
            d = I(f'buffer_load_dwordx4 v{V_AO if i & 1 else V_AE}, s[{SRD_A}:{SRD_A+3}], s{S_T0} offen lds'); d.tag = f'c{e}'
            o.append(d)
        for g in range(2):
            o.append(I(f's_lshl_b32 s{S_M0}, s{S_WAVE}, 10'))
            o.append(I(f's_add_u32 m0, s{S_M0}, {st + 32768 + g*8192}'))
            o.append(I(f's_lshl_b32 s{S_T0}, s{S_WAVE}, 16'))
            o.append(I(f's_add_u32 s{S_T0}, s{S_T0}, s{S_D + 4*g + 1}'))
            o.append(I(f's_add_u32 s{S_T0}, s{S_T0}, {e*64*8192}'))
            d = I(f'buffer_load_dwordx4 v{V_W}, s[{SRD_W}:{SRD_W+3}], s{S_T0} offen lds'); d.tag = f'c{e}'
            o.append(d)
        return o
    seq += chunk_dma(0) + chunk_dma(1)
    NB = 5
    for e in range(8):
        st = (e % 3) * 49152
        seq.append(Pseudo('WAITVM', f'c{e}'))
        seq.append(Pseudo('WAITLG', None))
        seq.append(I('s_barrier'))
        if STAMP:
            t = Asm(); stamp(t, 0, 100, 30); seq += t.ins
        units = [(s, g) for s in range(4) for g in range(2)]
        if st < 65536 - 49152 + 1 or True:
            pass
        if st == 98304: trb, off0, aro = V_TRE, 32768, None
        else: trb, off0, aro = V_TRO, st + 32768, st
        pre = []
        if off0 + 16384 > 65536:
            pre.append(I(f'v_add_u32 v{V_SCA}, {st}, v{V_TRO}'))
            pre.append(I(f'v_add_u32 v{V_SCB}, {st}, v{V_TRO+1}'))
            trb, off0 = V_SCA, 32768
        ard = []
        for s in range(4):
            if st == 0:
                ard.append(I(f'ds_read_b128 {vr(V_A + 4*(4*e+s), 4)}, v{V_AR+s}'))
            elif st == 49152:
                ard.append(I(f'ds_read_b128 {vr(V_A + 4*(4*e+s), 4)}, v{V_AR+s} offset:{st}'))
            else:
                ard.append(I(f'v_add_u32 v{V_RED}, {st}, v{V_AR+s}'))
                ard.append(I(f'ds_read_b128 {vr(V_A + 4*(4*e+s), 4)}, v{V_RED}'))
        def urd(u):
            s, g = units[u]
            return tr_reads(V_T + 8 * (u % NB), trb, off0 + g * 8192 + s * 2048)
        seq += pre
        seq += ard[:2] if st != 98304 else ard[:4]
        seq += urd(0) + urd(1)
        ard2 = ard[2:] if st != 98304 else ard[4:]
        slots = []
        for u in range(8):
            s, g = units[u]
            ks = 4 * e + s
            acc = V_X if g == 0 else V_Y
            buf = V_T + 8 * (u % NB)
            s0 = []
            if u + 2 < 8: s0 += urd(u + 2)
            s0.append(mfma(acc, buf, V_A + 4 * ks, ntype, ks == 0))
            slots.append(s0)
            slots.append([mfma(acc + 16, buf + 4, V_A + 4 * ks, ntype, ks == 0)] + (ard2 if u == 1 else []))
        fill = []
        if e + 2 < 8:
            cd = chunk_dma(e + 2)
            b = []
            for x in cd:
                b.append(x)
                if x.kind == 'dma': fill.append(b); b = []
        elif e == 6:
            fill = [setup_next_w(S_D + 8)] + dma_w_bundles(STG_E)
        seq += interleave(slots, fill, 0, 12) if fill else [x for s in slots for x in s]
    seq, lg, vm = auto_waits(seq)
    assert not lg
    assert [x.tag for x in vm] == ['wnext'] * 8, [x.tag for x in vm]
    return seq

def set_epi_params(d):
    return [I(x) for x in f'''s_mov_b32 s{S_OUT}, s{d+3}
s_bitcmp1_b32 s{d}, 4
s_cselect_b32 s{S_SCALE}, {f2u(QSCALE):#x}, 1.0'''.split('\n')]

def reduce_code(a):
    a(f's_cmp_eq_u32 s{S_PFLAG}, 0')
    lab = f'L_k1_nored_{len(a.ins)}'
    a(f's_cbranch_scc1 {lab}')
    seq = []
    for w in range(8):
        seq.append(I(f'ds_read_b64 {vr(V_T+2*w,2)}, v{V_RED} offset:{w*4096}'))
    for w in range(1, 8):
        seq.append(I(f'v_add_f32 v{V_T}, v{V_T}, v{V_T+2*w}'))
        seq.append(I(f'v_add_f32 v{V_T+1}, v{V_T+1}, v{V_T+2*w+1}'))
    seq.append(I(f's_lshl_b32 s{S_T0}, s{S_RB}, 16'))
    seq.append(I(f's_add_u32 s{S_T0}, s{S_T0}, s{S_POUT}'))
    seq.append(I(f'v_subrev_u32 v{V_T+2}, {SCR}, v{V_RED}'))
    seq.append(I(f'buffer_store_dwordx2 {vr(V_T,2)}, v{V_T+2}, s[{SRD_WS}:{SRD_WS+3}], s{S_T0} offen'))
    seq.append(I(f's_mov_b32 s{S_PFLAG}, 0'))
    seq, _, _ = auto_waits(seq)
    a.add(seq)
    a(f'{lab}:')

def gen_k1():
    a = Asm()
    a(f'''
.p2align 8
.globl proj_kernel
.type proj_kernel,@function
proj_kernel:
s_cmp_ge_u32 s2, 256
s_cbranch_scc1 L_k1_end
s_load_dwordx16 s[4:19], s[0:1], 0
s_load_dwordx8 s[20:27], s[0:1], 64
s_load_dwordx2 s[28:29], s[0:1], 96
s_getpc_b64 s[30:31]
s_add_u32 s30, s30, k1_table@rel32@lo+4
s_addc_u32 s31, s31, k1_table@rel32@hi+12
s_lshr_b32 s{S_RB}, s2, 5
s_and_b32 s{S_SLOT}, s2, 31
s_lshl_b32 s{S_T0}, s{S_SLOT}, 7
s_add_u32 s30, s30, s{S_T0}
s_addc_u32 s31, s31, 0
s_load_dwordx16 s[48:63], s[30:31], 0
s_load_dwordx16 s[64:79], s[30:31], 64
v_and_b32 v{V_LANE}, 63, v0
v_lshrrev_b32 v{V_T}, 6, v0
s_nop 0
v_readfirstlane_b32 s{S_WAVE}, v{V_T}
v_lshrrev_b32 v{V_ROW}, 3, v{V_LANE}
v_and_b32 v{V_T}, 7, v{V_LANE}
v_bfe_u32 v{V_T+1}, v{V_LANE}, 4, 1
v_lshlrev_b32 v{V_T+1}, 2, v{V_T+1}
v_xor_b32 v{V_T+2}, v{V_T}, v{V_T+1}
v_lshlrev_b32 v{V_C16}, 4, v{V_T+2}
v_lshrrev_b32 v{V_HI}, 2, v{V_T+2}
v_lshrrev_b32 v{V_T+1}, 4, v{V_LANE}
v_xor_b32 v{V_T+2}, v{V_T}, v{V_T+1}
v_lshlrev_b32 v{V_T+2}, 4, v{V_T+2}
v_lshl_add_u32 v{V_AE}, v{V_ROW}, 10, v{V_T+2}
v_xor_b32 v{V_AO}, 64, v{V_AE}
''')
    a(f'''
v_lshrrev_b32 v{V_T}, 5, v{V_LANE}
v_bfe_u32 v{V_T+1}, v{V_LANE}, 2, 2
v_lshl_add_u32 v{V_T}, v{V_T}, 3, v{V_T+1}
v_lshlrev_b32 v{V_T}, 7, v{V_T}
v_bfe_u32 v{V_T+1}, v{V_LANE}, 3, 1
v_lshl_add_u32 v{V_T}, v{V_T+1}, 6, v{V_T}
v_bfe_u32 v{V_T+1}, v{V_LANE}, 4, 1
v_lshl_add_u32 v{V_T}, v{V_T+1}, 5, v{V_T}
v_and_b32 v{V_T+1}, 3, v{V_LANE}
v_lshl_add_u32 v{V_TRO}, v{V_T+1}, 3, v{V_T}
v_xor_b32 v{V_TRO+1}, 64, v{V_TRO}
v_add_u32 v{V_TRE}, {STG_E}, v{V_TRO}
v_add_u32 v{V_TRE+1}, {STG_E}, v{V_TRO+1}
''')
    a(f'''
v_and_b32 v{V_T}, 31, v{V_LANE}
v_bfe_u32 v{V_T+1}, v{V_LANE}, 1, 3
v_lshrrev_b32 v{V_T+2}, 5, v{V_LANE}
v_xor_b32 v{V_T+1}, v{V_T+1}, v{V_T+2}
v_lshlrev_b32 v{V_T+1}, 4, v{V_T+1}
v_lshl_add_u32 v{V_T}, v{V_T}, 7, v{V_T+1}
s_lshl_b32 s{S_T0}, s{S_WAVE}, 12
v_add_u32 v{V_AR}, s{S_T0}, v{V_T}
v_xor_b32 v{V_AR+1}, 32, v{V_AR}
v_xor_b32 v{V_AR+2}, 64, v{V_AR}
v_xor_b32 v{V_AR+3}, 96, v{V_AR}
v_mov_b32 v{V_ONES}, 0x3f803f80
v_mov_b32 v{V_ONES+1}, 0x3f803f80
v_mov_b32 v{V_ONES+2}, 0x3f803f80
v_mov_b32 v{V_ONES+3}, 0x3f803f80
v_and_b32 v{V_T}, 16, v{V_LANE}
v_cmp_eq_u32 s[{S_MLO}:{S_MLO+1}], 0, v{V_T}
s_lshl_b32 s{S_T0}, s{S_RB}, 3
s_add_u32 s{S_T0}, s{S_T0}, s{S_WAVE}
s_lshl_b32 s{S_AOFF}, s{S_T0}, 15
s_lshr_b32 s{S_T1}, s{S_T0}, 1
s_lshl_b32 s{S_T1}, s{S_T1}, 15
s_and_b32 s{S_T0}, s{S_T0}, 1
s_lshl_b32 s{S_T0}, s{S_T0}, 13
s_add_u32 s{S_T0}, s{S_T0}, s{S_T1}
v_lshlrev_b32 v{V_ST}, 4, v{V_LANE}
v_add_u32 v{V_ST}, s{S_T0}, v{V_ST}
s_mov_b32 s{S_PFLAG}, 0
s_mov_b32 s{S_L2E}, {f2u(LOG2E):#x}
s_mov_b32 s{S_EPS}, {f2u(1e-6):#x}
s_waitcnt lgkmcnt(0)
s_cmp_lt_u32 s{S_SLOT}, 19
s_cselect_b64 s[{SRD_A}:{SRD_A+1}], s[{S_CKV}:{S_CKV+1}], s[{S_X}:{S_X+1}]
s_mov_b32 s{SRD_A+2}, {2048*1024}
s_mov_b32 s{SRD_A+3}, 0x20000
s_mov_b32 s{SRD_W+3}, 0x20000
s_mov_b64 s[{SRD_WS}:{SRD_WS+1}], s[{S_WS}:{S_WS+1}]
s_mov_b32 s{SRD_WS+2}, {WS_SIZE}
s_mov_b32 s{SRD_WS+3}, 0x20000
s_mov_b64 s[{SRD_G}:{SRD_G+1}], s[{S_GATE}:{S_GATE+1}]
s_mov_b32 s{SRD_G+2}, 1024
s_mov_b32 s{SRD_G+3}, 0x20000
s_lshr_b32 s{S_GFLAG}, s{S_D}, 9
''')
    stamp_init(a, 0, 100); ST = lambda: stamp(a, 0, 100, 30)
    ST(); stamp_rt(a, 0, 62, 30)
    a.add(setup_next_w(S_D))
    a(f's_bitcmp1_b32 s{S_D}, 2')
    a('s_cbranch_scc1 L_k1_p1n')
    a.add(pass1(False))
    a('s_branch L_k1_p1done')
    a('L_k1_p1n:')
    a.add(pass1(True))
    a('L_k1_p1done:')
    ST()
    a(f'''
s_lshl_b32 s{S_T0}, s{S_WAVE}, 12
s_add_u32 s{S_T0}, s{S_T0}, {SCR}
v_lshlrev_b32 v{V_SCA}, 5, v{V_LANE}
v_add_u32 v{V_SCA}, s{S_T0}, v{V_SCA}
v_xor_b32 v{V_SCB}, {16*32 + 2048}, v{V_SCA}
s_lshl_b32 s{S_T0}, s{S_WAVE}, 9
s_add_u32 s{S_T0}, s{S_T0}, {SCR}
v_lshlrev_b32 v{V_RED}, 3, v{V_LANE}
v_add_u32 v{V_RED}, s{S_T0}, v{V_RED}
''')
    a.add(set_epi_params(S_D))
    a('s_nop 3')
    a.add(epi_e1(V_X))
    a('s_waitcnt vmcnt(4)')
    def shift():
        for i in range(0, 28, 2):
            a(f's_mov_b64 s[{S_D+i}:{S_D+i+1}], s[{S_D+4+i}:{S_D+5+i}]')
        a(f's_mov_b32 s{S_D+28}, 0')
    shift()
    a('L_k1_even:')
    a('s_barrier')
    ST()
    reduce_code(a)
    a.add(set_epi_params(S_D))
    a.add(setup_next_w(S_D + 8))
    a(f's_bitcmp1_b32 s{S_D+4}, 2')
    a('s_cbranch_scc1 L_k1_even_n')
    a.add(body(False, 0, 'e1'))
    a('s_branch L_k1_even_done')
    a('L_k1_even_n:')
    a.add(body(True, 0, 'e1'))
    a('L_k1_even_done:')
    ST()
    shift()
    a(f's_bitcmp1_b32 s{S_D+4}, 8')
    a('s_cbranch_scc0 L_k1_final_x')
    a('s_barrier')
    ST()
    a.add(set_epi_params(S_D))
    a.add(setup_next_w(S_D + 8))
    a(f's_bitcmp1_b32 s{S_D}, 5')
    a('s_cbranch_scc1 L_k1_odd_b')
    a(f's_bitcmp1_b32 s{S_D+4}, 2')
    a('s_cbranch_scc1 L_k1_odd_n')
    a.add(body(False, 1, 'e1'))
    a('s_branch L_k1_odd_done')
    a('L_k1_odd_n:')
    a.add(body(True, 1, 'e1'))
    a('s_branch L_k1_odd_done')
    a('L_k1_odd_b:')
    a(f's_bitcmp1_b32 s{S_D}, 4')
    a('s_cbranch_scc1 L_k1_odd_bkv')
    a.add(body(False, 1, 'bq'))
    a('s_branch L_k1_odd_done')
    a('L_k1_odd_bkv:')
    a.add(body(False, 1, 'bkv'))
    a('L_k1_odd_done:')
    ST()
    shift()
    a(f's_bitcmp1_b32 s{S_D+4}, 8')
    a('s_cbranch_scc1 L_k1_even')
    a.add(set_epi_params(S_D))
    a.add(epi_e1(V_Y))
    a('s_branch L_k1_tail')
    a('L_k1_final_x:')
    a.add(set_epi_params(S_D))
    a.add(epi_e1(V_X))
    a('L_k1_tail:')
    ST()
    if STAMP:
        a('s_waitcnt vmcnt(0)'); ST(); stamp_rt(a, 0, 63, 30); stamp_store(a, 0, V_T, V_LANE, SRD_WS, S_WAVE, 30, 0)
    a(f's_cmp_eq_u32 s{S_GFLAG}, 0')
    a('s_cbranch_scc1 L_k1_end')
    seq = [I(f'v_lshrrev_b32 v{V_T}, 5, v{V_LANE}'), I(f'v_lshlrev_b32 v{V_T}, 4, v{V_T}'), I('s_nop 1')]
    for b in range(4):
        base = V_WB - 16
        base = 28
        for i in range(8):
            seq.append(I(f'buffer_load_dwordx4 {vr(base+4*i,4)}, v{V_T}, s[{SRD_G}:{SRD_G+3}], 0 offen offset:{(8*b+i)*32}'))
        for i in range(8):
            ks = 8 * b + i
            seq.append(mfma(V_X, base + 4 * i, V_A + 4 * ks, False, ks == 0))
    seq += [I('s_nop 7'), I('s_nop 4'),
            I(f'v_mul_f32 v{V_X}, s{S_L2E}, v{V_X}'),
            I(f'v_exp_f32 v{V_X}, -v{V_X}'),
            I('s_nop 0'),
            I(f'v_add_f32 v{V_X}, 1.0, v{V_X}'),
            I(f'v_rcp_f32 v{V_X}, v{V_X}'),
            I(f'v_and_b32 v{V_T}, 31, v{V_LANE}'),
            I(f'v_lshlrev_b32 v{V_T}, 2, v{V_T}'),
            I(f's_lshr_b32 s{S_T0}, s{S_AOFF}, 8'),
            I(f's_add_u32 s{S_T0}, s{S_T0}, {G_BASE}'),
            I(f'buffer_store_dword v{V_X}, v{V_T}, s[{SRD_WS}:{SRD_WS+3}], s{S_T0} offen')]
    seq, _, _ = auto_waits(seq)
    a.add(seq)
    a('L_k1_end:')
    a('s_waitcnt vmcnt(0)')
    a('s_endpgm')
    return a

K1_DESC = '''
.amdhsa_kernel proj_kernel
  .amdhsa_next_free_vgpr 256
  .amdhsa_next_free_sgpr 102
  .amdhsa_accum_offset 256
  .amdhsa_group_segment_fixed_size 0
  .amdhsa_kernarg_size 104
  .amdhsa_user_sgpr_count 2
  .amdhsa_user_sgpr_kernarg_segment_ptr 1
  .amdhsa_system_sgpr_workgroup_id_x 1
.end_amdhsa_kernel
'''
```

```python
from core import *
from layout import *
import os

PD = int(os.environ.get('K2_PD', '5'))
NF = 8
THR = 65536.0
NEGBIG = -1.0e30

S_WS = 4
SRD_WS, SRD_NUL = 8, 12
S_WAVE, S_H, S_I, S_R, S_CNT, S_T, S_TL, S_STG, S_LSTG, S_LOFF, S_T0, S_T1, S_G0, S_LP, S_THR = 16, 17, 18, 19, 20, 21, 22, 23, 24, 25, 26, 27, 28, 29, 32
S_RET = 34
S_HB = 36
S_MASK = 40
S_SRDL = 72
V_LANE, V_L16, V_CUR, V_NXT, V_L, V_PA, V_PB, V_G, V_NEG, V_MX, V_MY, V_F = 1, 2, 3, 4, 5, 6, 7, 8, 9, 10, 11, 12
V_E = 16
V_Q, V_O, V_S, V_NM, V_P, V_FB = 32, 64, 128, 160, 176, 192

def MF(d, a, b, c): return I(f'v_mfma_f32_32x32x16_bf16 {vr(d,16)}, {vr(a,4)}, {vr(b,4)}, {c}')
def rd(buf, addr, off): return I(f'ds_read_b128 {vr(V_FB + 4*buf, 4)}, v{addr} offset:{off}')

def sm_fill(sx, px):
    f = []
    def post(i):
        ea, eb = V_E + 2 * (i % 4), V_E + 2 * (i % 4) + 1
        if i == 0:
            o = [I(f'v_mov_b32 v{V_PA}, v{ea}'), I(f'v_mov_b32 v{V_PB}, v{eb}')] if False else []
        o = []
        if i == 1:
            pa, pb = V_E, V_E + 1
            o.append(I(f'v_add_f32 v{V_PA}, v{pa}, v{ea}')); o.append(I(f'v_add_f32 v{V_PB}, v{pb}, v{eb}'))
        elif i > 1:
            o.append(I(f'v_add_f32 v{V_PA}, v{V_PA}, v{ea}')); o.append(I(f'v_add_f32 v{V_PB}, v{V_PB}, v{eb}'))
        o.append(I(f'v_cvt_pk_bf16_f32 v{px+i}, v{ea}, v{eb}'))
        return o
    for i in range(8):
        ea, eb = V_E + 2 * (i % 4), V_E + 2 * (i % 4) + 1
        f.append(I(f'v_exp_f32 v{ea}, v{sx+2*i}'))
        f.append(I(f'v_exp_f32 v{eb}, v{sx+2*i+1}'))
        if i > 0: f += post(i - 1)
    f += [I('s_nop 0')] + post(7)
    f.append(I(f'v_add_f32 v{V_PA}, v{V_PA}, v{V_PB}'))
    return f

_uid = [0]
def sm_check(par):
    _uid[0] += 1
    l = f'L_k2_ok{_uid[0]}'
    return [I(f'v_cmp_nle_f32 vcc, v{V_PA}, v{V_NEG+4}'),
            I(f's_cbranch_vccz {l}'),
            I(f's_call_b64 s[{S_RET}:{S_RET+1}], L_k2_slow{par}'),
            I(f'{l}:'),
            I(f'v_add_f32 v{V_L}, v{V_L}, v{V_PA}')]
V_THR = V_NEG + 4

def frag_list(par):
    k = [16384 + par * 8192 + ks * 1024 for ks in range(8)]
    v = [par * 8192 + dt * 2048 + k2 * 1024 for k2 in range(2) for dt in range(4)]
    return k + v

def step_body():
    seq = []
    entry = [rd(n % NF, V_CUR, frag_list(0)[n]) for n in range(PD)]
    lg = list(entry)
    parts = []
    for par in range(2):
        fl = frag_list(par); nl = frag_list(1 - par)
        slots = []
        for n in range(16):
            g = par * 16 + n
            s = []
            m = n + PD
            if m < 16: s.append(rd((g + PD) % NF, V_CUR, fl[m]))
            else: s.append(rd((g + PD) % NF, V_CUR if par == 0 else V_NXT, nl[m - 16]))
            buf = V_FB + 4 * (g % NF)
            if n < 8:
                sd = V_S + 16 * par
                s.append(MF(sd, buf, V_Q + 4 * n, vr(V_NM, 16) if n == 0 else vr(sd, 16)))
            else:
                k2, dt = (n - 8) >> 2, (n - 8) & 3
                s.append(MF(V_O + 16 * dt, buf, V_P + 8 * par + 4 * k2, vr(V_O + 16 * dt, 16)))
            slots.append(s)
        fill = sm_fill(V_S + 16 * (1 - par), V_P + 8 * (1 - par))
        head = [I(f's_cmp_eq_u32 s{S_CNT}, 0'), I(f's_cbranch_scc1 L_k2_tail{par}'), I(f's_sub_u32 s{S_CNT}, s{S_CNT}, 1')]
        body = head + interleave(slots, fill, 0, 16) + sm_check(1 - par)
        body, lg, _ = auto_waits(body, lg=lg)
        seq += body
    assert [x.w for x in lg] == [x.w for x in entry], ([x.text for x in lg])
    return seq, entry

def pv_only(par, addr, off, fill=None):
    offs = [off + dt * 2048 + k2 * 1024 for k2 in range(2) for dt in range(4)]
    pre = [rd(n, addr, offs[n]) for n in range(8)]
    slots = []
    for n in range(8):
        k2, dt = n >> 2, n & 3
        slots.append([MF(V_O + 16 * dt, V_FB + 4 * n, V_P + 8 * par + 4 * k2, vr(V_O + 16 * dt, 16))])
    if fill:
        nh = min(len(fill), 20)
        seq = pre + fill[:nh] + interleave(slots, fill[nh:], 0, 8)
    else:
        seq = pre + [x for s in slots for x in s]
    seq, lg, _ = auto_waits(seq)
    assert not lg
    return seq

def mask_fill(sx):
    return [I(f'v_cndmask_b32 v{sx+i}, v{sx+i}, v{V_NEG}, s[{S_MASK+2*i}:{S_MASK+2*i+1}]') for i in range(16)]

def rowmax(sx):
    f = [I(f'v_max3_f32 v{V_MX}, v{sx}, v{sx+1}, v{sx+2}')]
    for i in range(3, 15, 2):
        f.append(I(f'v_max3_f32 v{V_MX}, v{V_MX}, v{sx+i}, v{sx+i+1}'))
    f.append(I(f'v_max_f32 v{V_MX}, v{V_MX}, v{sx+15}'))
    f.append(I(f'v_mov_b32 v{V_MY}, v{V_MX}'))
    f.append(I('s_nop 1'))
    f.append(I(f'v_permlane32_swap_b32 v{V_MX}, v{V_MY}'))
    f.append(I(f'v_max_f32 v{V_MX}, v{V_MX}, v{V_MY}'))
    return f

def loader_block(a):
    a(f'''
s_cmp_le_u32 s{S_LP}, s{S_TL}
s_cselect_b32 s{S_SRDL+2}, s{SRD_WS+2}, 0
s_lshl_b32 s{S_T0}, s{S_WAVE}, 13
s_add_u32 m0, s{S_LSTG}, s{S_T0}
s_add_u32 s{S_T1}, s{S_LOFF}, 4096
buffer_load_dwordx4 v{V_L16}, s[{S_SRDL}:{S_SRDL+3}], s{S_LOFF} offen lds
buffer_load_dwordx4 v{V_L16}, s[{S_SRDL}:{S_SRDL+3}], s{S_LOFF} offen offset:1024 lds
buffer_load_dwordx4 v{V_L16}, s[{S_SRDL}:{S_SRDL+3}], s{S_LOFF} offen offset:2048 lds
buffer_load_dwordx4 v{V_L16}, s[{S_SRDL}:{S_SRDL+3}], s{S_LOFF} offen offset:3072 lds
s_add_u32 m0, m0, 4096
s_add_u32 s{S_LOFF}, s{S_LOFF}, 32768
buffer_load_dwordx4 v{V_L16}, s[{S_SRDL}:{S_SRDL+3}], s{S_T1} offen lds
buffer_load_dwordx4 v{V_L16}, s[{S_SRDL}:{S_SRDL+3}], s{S_T1} offen offset:1024 lds
buffer_load_dwordx4 v{V_L16}, s[{S_SRDL}:{S_SRDL+3}], s{S_T1} offen offset:2048 lds
buffer_load_dwordx4 v{V_L16}, s[{S_SRDL}:{S_SRDL+3}], s{S_T1} offen offset:3072 lds
s_add_u32 s{S_LP}, s{S_LP}, 1
s_add_u32 s{S_LSTG}, s{S_LSTG}, 32768
s_cmp_eq_u32 s{S_LSTG}, 163840
s_cselect_b32 s{S_LSTG}, 0, s{S_LSTG}
''')

def step_boundary(a, first=False):
    _uid[0] += 1; u = _uid[0]
    a(f'''
s_cmp_eq_u32 s{S_G0}, 0
s_cbranch_scc1 L_k2_nb{u}
s_waitcnt vmcnt(16)
s_barrier
''')
    loader_block(a)
    a(f'''
s_branch L_k2_nbd{u}
L_k2_nb{u}:
s_barrier
L_k2_nbd{u}:
''')
    if not first:
        a(f'v_mov_b32 v{V_CUR}, v{V_NXT}')
        a(f's_add_u32 s{S_T}, s{S_T}, 1')
    a(f'''
s_add_u32 s{S_STG}, s{S_STG}, 32768
s_cmp_eq_u32 s{S_STG}, 163840
s_cselect_b32 s{S_STG}, 0, s{S_STG}
v_add_u32 v{V_NXT}, s{S_STG}, v{V_L16}
''')

def gen_k2():
    a = Asm()
    ST = lambda: stamp(a, 0, 100, 30)
    a(f'''
.p2align 8
.globl attn_kernel
.type attn_kernel,@function
attn_kernel:
s_cmp_ge_u32 s2, 256
s_cbranch_scc1 L_k2_end
s_load_dwordx2 s[4:5], s[0:1], 96
v_and_b32 v{V_LANE}, 63, v0
v_lshrrev_b32 v{V_E}, 6, v0
v_lshlrev_b32 v{V_L16}, 4, v{V_LANE}
v_readfirstlane_b32 s{S_WAVE}, v{V_E}
s_and_b32 s{S_T0}, s2, 7
s_lshr_b32 s{S_T1}, s2, 3
s_and_b32 s{S_H}, s{S_T1}, 3
s_lshl_b32 s{S_T0}, s{S_T0}, 2
s_add_u32 s{S_H}, s{S_H}, s{S_T0}
s_lshr_b32 s{S_I}, s{S_T1}, 2
s_lshl_b32 s{S_T0}, s{S_I}, 2
s_add_u32 s{S_R}, s{S_T0}, s{S_WAVE}
s_sub_u32 s{S_T1}, 67, s{S_R}
s_cmp_lt_u32 s{S_WAVE}, 4
s_cselect_b32 s{S_R}, s{S_R}, s{S_T1}
s_cselect_b32 s{S_G0}, 1, 0
s_lshl_b32 s{S_T0}, s{S_I}, 1
s_sub_u32 s{S_TL}, 31, s{S_T0}
s_lshl_b32 s{S_HB}, s{S_H}, 20
s_waitcnt lgkmcnt(0)
s_mov_b64 s[{SRD_WS}:{SRD_WS+1}], s[4:5]
s_mov_b32 s{SRD_WS+2}, {WS_SIZE}
s_mov_b32 s{SRD_WS+3}, 0x20000
s_mov_b64 s[{S_SRDL}:{S_SRDL+1}], s[4:5]
s_mov_b32 s{S_SRDL+2}, {WS_SIZE}
s_mov_b32 s{S_SRDL+3}, 0x20000
''')
    stamp_init(a, 0, 100); ST(); stamp_rt(a, 0, 62, 30)
    a(f'''
s_cmp_eq_u32 s{S_G0}, 0
s_cbranch_scc1 L_k2_pl1
s_lshl_b32 s{S_T0}, s{S_WAVE}, 12
s_add_u32 m0, s{S_T0}, {4*32768 + 16384}
s_add_u32 s{S_T1}, s{S_HB}, s{S_T0}
buffer_load_dwordx4 v{V_L16}, s[{SRD_WS}:{SRD_WS+3}], s{S_T1} offen lds
buffer_load_dwordx4 v{V_L16}, s[{SRD_WS}:{SRD_WS+3}], s{S_T1} offen offset:1024 lds
buffer_load_dwordx4 v{V_L16}, s[{SRD_WS}:{SRD_WS+3}], s{S_T1} offen offset:2048 lds
buffer_load_dwordx4 v{V_L16}, s[{SRD_WS}:{SRD_WS+3}], s{S_T1} offen offset:3072 lds
L_k2_pl1:
s_lshr_b32 s{S_T0}, s{S_R}, 1
s_lshl_b32 s{S_T0}, s{S_T0}, 15
s_and_b32 s{S_T1}, s{S_R}, 1
s_lshl_b32 s{S_T1}, s{S_T1}, 13
s_add_u32 s{S_T0}, s{S_T0}, s{S_T1}
s_add_u32 s{S_T0}, s{S_T0}, s{S_HB}
s_add_u32 s{S_T0}, s{S_T0}, {QP_BASE}
s_add_u32 s{S_T1}, s{S_T0}, 4096
''')
    for ks in range(8):
        a(f'buffer_load_dwordx4 {vr(V_Q+4*ks,4)}, v{V_L16}, s[{SRD_WS}:{SRD_WS+3}], s{S_T0 if ks < 4 else S_T1} offen offset:{(ks&3)*1024}')
    a(f'''
v_and_b32 v{V_E}, 31, v{V_LANE}
v_lshlrev_b32 v{V_E+1}, 2, v{V_E}
s_lshl_b32 s{S_T0}, s{S_R}, 7
s_add_u32 s{S_T0}, s{S_T0}, {G_BASE}
buffer_load_dword v{V_G}, v{V_E+1}, s[{SRD_WS}:{SRD_WS+3}], s{S_T0} offen
s_mov_b32 s{S_LP}, 0
s_mov_b32 s{S_LSTG}, 0
s_lshl_b32 s{S_T0}, s{S_WAVE}, 13
s_add_u32 s{S_LOFF}, s{S_HB}, s{S_T0}
s_add_u32 s{S_LOFF}, s{S_LOFF}, 16384
s_cmp_eq_u32 s{S_G0}, 0
s_cbranch_scc1 L_k2_pl2
''')
    for p in range(4): loader_block(a)
    a('L_k2_pl2:')
    a(f'''
v_lshrrev_b32 v{V_E+1}, 5, v{V_LANE}
v_lshlrev_b32 v{V_E+1}, 2, v{V_E+1}
v_sub_u32 v{V_E}, v{V_E}, v{V_E+1}
v_mov_b32 v{V_NEG}, {f2u(NEGBIG):#x}
v_mov_b32 v{V_THR}, {f2u(THR):#x}
v_mov_b32 v{V_L}, 0
''')
    for i in range(16):
        c = (i & 3) + 8 * (i >> 2)
        a(f'v_cmp_gt_i32 s[{S_MASK+2*i}:{S_MASK+2*i+1}], {c}, v{V_E}')
    for i in range(64): a(f'v_mov_b32 v{V_O+i}, 0')
    a(f'''
v_add_u32 v{V_CUR}, {4*32768}, v{V_L16}
v_mov_b32 v{V_NXT}, v{V_L16}
s_mov_b32 s{S_STG}, 0
s_mov_b32 s{S_T}, 0
s_sub_u32 s{S_CNT}, s{S_R}, 1
s_max_i32 s{S_CNT}, s{S_CNT}, 0
s_cmp_eq_u32 s{S_G0}, 0
s_cbranch_scc1 L_k2_pl3
s_waitcnt vmcnt(32)
s_branch L_k2_pl4
L_k2_pl3:
s_waitcnt vmcnt(0)
L_k2_pl4:
s_barrier
''')
    ST()
    seq = [rd(n, V_CUR, 16384 + n * 1024) for n in range(8)]
    for n in range(8):
        seq.append(MF(V_S, V_FB + 4 * n, V_Q + 4 * n, '0' if n == 0 else vr(V_S, 16)))
        seq.append(rd(n, V_CUR, 16384 + 8192 + n * 1024))
    seq += [I('s_nop 7'), I('s_nop 3')]
    seq, lg, _ = auto_waits(seq)
    a.add(seq)
    a(f's_cmp_lg_u32 s{S_R}, 0')
    a('s_cbranch_scc1 L_k2_nomask0')
    a.add(mask_fill(V_S))
    a('L_k2_nomask0:')
    seq = rowmax(V_S)
    for i in range(16): seq.append(I(f'v_sub_f32 v{V_NM+i}, 0, v{V_MX}'))
    seq.append(I('s_nop 0'))
    fill = [I(f'v_sub_f32 v{V_S+i}, v{V_S+i}, v{V_MX}') for i in range(16)] + sm_fill(V_S, V_P) + [I(f'v_add_f32 v{V_L}, v{V_L}, v{V_PA}')]
    slots = [[MF(V_S + 16, V_FB + 4 * n, V_Q + 4 * n, vr(V_NM, 16) if n == 0 else vr(V_S + 16, 16))] for n in range(8)]
    seq += interleave(slots, fill, 0, 8)
    seq, lg, _ = auto_waits(seq, lg=lg)
    assert not lg
    a.add(seq)
    ST()
    a(f'v_mov_b32 v{V_CUR}, v{V_NXT}')
    step_boundary(a, first=True)
    a(f's_cmp_eq_u32 s{S_R}, 0')
    a('s_cbranch_scc1 L_k2_tailB0')
    body, entry = step_body()
    a.add([I(x.text) for x in entry])
    a('s_branch L_k2_body')
    a('.p2align 6')
    a('L_k2_step:')
    step_boundary(a)
    a('L_k2_body:')
    a.add(body)
    a('s_branch L_k2_step')
    a('L_k2_tail0:')
    a('s_waitcnt lgkmcnt(0)')
    a.add(pv_only(0, V_CUR, 0, mask_fill(V_S + 16) + sm_fill(V_S + 16, V_P + 8)))
    a.add(sm_check(1))
    a('s_nop 0')
    a.add(pv_only(1, V_CUR, 8192))
    a('s_branch L_k2_epi')
    a('L_k2_tail1:')
    a('s_waitcnt lgkmcnt(0)')
    a.add(pv_only(1, V_CUR, 8192, mask_fill(V_S) + sm_fill(V_S, V_P)))
    a.add(sm_check(0))
    step_boundary(a)
    a('L_k2_tailB0:')
    a.add(pv_only(0, V_CUR, 0))
    a('L_k2_epi:')
    ST()
    a(f'''
v_mov_b32 v{V_MY}, v{V_L}
s_nop 1
v_permlane32_swap_b32 v{V_L}, v{V_MY}
v_add_f32 v{V_L}, v{V_L}, v{V_MY}
v_rcp_f32 v{V_L}, v{V_L}
s_mul_i32 s{S_T0}, s{S_R}, {288*1024}
s_lshl_b32 s{S_T1}, s{S_H}, 13
s_add_u32 s{S_T0}, s{S_T0}, s{S_T1}
s_add_u32 s{S_T0}, s{S_T0}, {CF_BASE}
s_add_u32 s{S_T1}, s{S_T0}, 4096
v_mul_f32 v{V_F}, v{V_L}, v{V_G}
s_nop 3
''')
    for dt in range(4):
        z = V_O + 16 * dt
        for i in range(8):
            a(f'v_mul_f32 v{z+2*i}, v{V_F}, v{z+2*i}')
            a(f'v_mul_f32 v{z+2*i+1}, v{V_F}, v{z+2*i+1}')
            a(f'v_cvt_pk_bf16_f32 v{z+i}, v{z+2*i}, v{z+2*i+1}')
            if i in (3, 7):
                q = 2 * dt + (i >> 2)
                a(f'buffer_store_dwordx4 {vr(z + (i>>2)*4, 4)}, v{V_L16}, s[{SRD_WS}:{SRD_WS+3}], s{S_T0 if q < 4 else S_T1} offen offset:{(q&3)*1024}')
    a(f's_cmp_eq_u32 s{S_G0}, 0')
    a('s_cbranch_scc1 L_k2_fin')
    a('L_k2_ldloop:')
    a(f's_add_u32 s{S_T}, s{S_T}, 1')
    a(f's_cmp_ge_u32 s{S_T}, s{S_TL}')
    a('s_cbranch_scc1 L_k2_ojob')
    a('s_waitcnt vmcnt(16)')
    a('s_barrier')
    loader_block(a)
    a('s_branch L_k2_ldloop')
    a('L_k2_ojob:')
    ST()
    seq = []
    seq.append(I(f'v_lshlrev_b32 v{V_E}, 5, v{V_LANE}'))
    seq.append(I(f's_lshl_b32 s{S_T0}, s{S_H}, 11'))
    seq.append(I(f's_add_u32 s{S_T0}, s{S_T0}, {P_BASE}'))
    for rb in range(8):
        seq.append(I(f'buffer_load_dwordx4 {vr(V_O+8*rb,4)}, v{V_E}, s[{SRD_WS}:{SRD_WS+3}], s{S_T0} offen'))
        seq.append(I(f'buffer_load_dwordx4 {vr(V_O+8*rb+4,4)}, v{V_E}, s[{SRD_WS}:{SRD_WS+3}], s{S_T0} offen offset:16'))
        if rb < 7: seq.append(I(f's_add_u32 s{S_T0}, s{S_T0}, 65536'))
    seq.append(I(f'v_and_b32 v{V_E+1}, 31, v{V_LANE}'))
    seq.append(I(f'v_lshlrev_b32 v{V_E+1}, 2, v{V_E+1}'))
    seq += [I(x) for x in f'''s_lshr_b32 s{S_LP}, s{S_H}, 3
s_lshl_b32 s{S_LP}, s{S_LP}, 20
s_and_b32 s{S_T0}, s{S_H}, 7
s_lshl_b32 s{S_T0}, s{S_T0}, 10
s_add_u32 s{S_LP}, s{S_LP}, s{S_T0}
s_add_u32 s{S_LP}, s{S_LP}, {QP_BASE + 16384}
s_sub_u32 s{S_CNT}, 63, s{S_R}'''.split('\n')]
    for j, sr_ in enumerate((S_R, S_CNT)):
        seq += [I(x) for x in f'''s_lshr_b32 s{S_T0}, s{sr_}, 1
s_lshl_b32 s{S_T0}, s{S_T0}, 15
s_and_b32 s{S_T1}, s{sr_}, 1
s_lshl_b32 s{S_T1}, s{S_T1}, 13
s_add_u32 s{S_T0}, s{S_T0}, s{S_T1}
s_add_u32 s{S_T0}, s{S_T0}, s{S_LP}
buffer_load_dwordx4 {vr(V_Q+4*j,4)}, v{V_L16}, s[{SRD_WS}:{SRD_WS+3}], s{S_T0} offen
s_lshl_b32 s{S_T0}, s{sr_}, 7
s_add_u32 s{S_T0}, s{S_T0}, {G_BASE}
buffer_load_dword v{V_E+2+j}, v{V_E+1}, s[{SRD_WS}:{SRD_WS+3}], s{S_T0} offen'''.split('\n')]
    for rb in range(1, 8):
        for i in range(8):
            seq.append(I(f'v_add_f32 v{V_O+i}, v{V_O+i}, v{V_O+8*rb+i}'))
    for i in range(4):
        seq.append(I(f'v_cvt_pk_bf16_f32 v{V_Q+8+i}, v{V_O+2*i}, v{V_O+2*i+1}'))
    seq.append(I('s_nop 1'))
    for j in range(2):
        seq.append(MF(V_S + 16 * j, V_Q + 8, V_Q + 4 * j, '0'))
    seq += [I('s_nop 7'), I('s_nop 3')]
    for j, sr_ in enumerate((S_R, S_CNT)):
        z = V_S + 16 * j
        seq += [I(x) for x in f'''v_add_f32 v{z+8}, {f2u(1e-6):#x}, v{z+8}
v_rcp_f32 v{z+8}, v{z+8}
v_sub_f32 v{V_E+2+j}, 1.0, v{V_E+2+j}
v_mul_f32 v{z+8}, v{z+8}, v{V_E+2+j}'''.split('\n')]
        for i in range(8): seq.append(I(f'v_mul_f32 v{z+i}, v{z+8}, v{z+i}'))
        for i in range(4): seq.append(I(f'v_cvt_pk_bf16_f32 v{z+i}, v{z+2*i}, v{z+2*i+1}'))
        seq += [I(x) for x in f'''s_mul_i32 s{S_T0}, s{sr_}, {288*1024}
s_lshl_b32 s{S_T1}, s{S_H}, 10
s_add_u32 s{S_T0}, s{S_T0}, s{S_T1}
s_add_u32 s{S_T0}, s{S_T0}, {CF_BASE + 256*1024}
buffer_store_dwordx4 {vr(z,4)}, v{V_L16}, s[{SRD_WS}:{SRD_WS+3}], s{S_T0} offen'''.split('\n')]
    seq, _, _ = auto_waits(seq)
    a.add(seq)
    a('L_k2_fin:')
    if STAMP:
        a('s_waitcnt vmcnt(0)'); ST(); stamp_rt(a, 0, 63, 30); stamp_store(a, 0, V_E, V_LANE, SRD_WS, S_WAVE, 30, 1)
    a('L_k2_end:')
    a('s_waitcnt vmcnt(0)')
    a('s_endpgm')
    for par in range(2):
        sx, sy, px = V_S + 16 * par, V_S + 16 * (1 - par), V_P + 8 * par
        a(f'L_k2_slow{par}:')
        a('s_nop 15')
        a.add(rowmax(sx))
        a(f'v_max_f32 v{V_MX}, 0, v{V_MX}')
        a(f'v_exp_f32 v{V_F}, -v{V_MX}')
        for i in range(16):
            a(f'v_sub_f32 v{V_NM+i}, v{V_NM+i}, v{V_MX}')
            a(f'v_sub_f32 v{sx+i}, v{sx+i}, v{V_MX}')
            a(f'v_sub_f32 v{sy+i}, v{sy+i}, v{V_MX}')
        a(f'v_mul_f32 v{V_L}, v{V_L}, v{V_F}')
        for i in range(64): a(f'v_mul_f32 v{V_O+i}, v{V_O+i}, v{V_F}')
        a.add(sm_fill(sx, px))
        a('s_nop 1')
        a(f's_setpc_b64 s[{S_RET}:{S_RET+1}]')
    return a

K2_DESC = '''
.amdhsa_kernel attn_kernel
  .amdhsa_next_free_vgpr 256
  .amdhsa_next_free_sgpr 102
  .amdhsa_accum_offset 256
  .amdhsa_group_segment_fixed_size 0
  .amdhsa_kernarg_size 104
  .amdhsa_user_sgpr_count 2
  .amdhsa_user_sgpr_kernarg_segment_ptr 1
  .amdhsa_system_sgpr_workgroup_id_x 1
.end_amdhsa_kernel
'''
```

```python
from core import *
from layout import *
import os

D = int(os.environ.get('K3_D', '8'))
NK = 36
RING = 16384
assert D * 2048 <= RING

SRD_WS, SRD_WO, SRD_WB, SRD_OUT = 8, 12, 16, 20
S_WAVE, S_QT, S_MT, S_T0, S_T1, S_B0, S_B1, S_A, S_LB = 24, 25, 26, 27, 28, 29, 32, 33, 34
V_LANE, V_L16, V_W, V_TR, V_T = 1, 2, 3, 4, 8
V_AF = 16
V_ACC = 32
V_B = 96

def MF(d, a, b, c): return I(f'v_mfma_f32_32x32x16_bf16 {vr(d,16)}, {vr(a,4)}, {vr(b,4)}, {c}')

def loads(s):
    o = []
    slot = s % D
    if s == 32:
        o += [I(f's_lshl_b32 s{S_T0}, s{S_WAVE}, 16'),
              I(f's_lshl_b32 s{S_T1}, s{S_MT}, 7'),
              I(f's_add_u32 s{S_A}, s{S_T0}, s{S_T1}'),
              I(f's_mul_i32 s{S_T0}, s{S_WAVE}, {28*1024}'),
              I(f's_sub_u32 s{S_T0}, {224*1024}, s{S_T0}'),
              I(f's_add_u32 s{S_B0}, s{S_B0}, s{S_T0}'),
              I(f's_add_u32 s{S_B1}, s{S_B1}, s{S_T0}')]
    srd = SRD_WO if s < 32 else SRD_WB
    o.append(I(f's_add_u32 m0, s{S_LB}, {slot*2048}'))
    o.append(I(f's_add_u32 s{S_T1}, s{S_A}, {8192 - 1024}'))
    d0 = I(f'buffer_load_dwordx4 v{V_W}, s[{srd}:{srd+3}], s{S_A} offen lds')
    d1 = I(f'buffer_load_dwordx4 v{V_W}, s[{srd}:{srd+3}], s{S_T1} offen offset:1024 lds')
    b = V_B + 8 * slot
    off = (s & 3) * 1024
    l0 = I(f'buffer_load_dwordx4 {vr(b,4)}, v{V_L16}, s[{SRD_WS}:{SRD_WS+3}], s{S_B0} offen offset:{off}')
    l1 = I(f'buffer_load_dwordx4 {vr(b+4,4)}, v{V_L16}, s[{SRD_WS}:{SRD_WS+3}], s{S_B1} offen offset:{off}')
    for x in (d0, d1, l0, l1): x.tag = f'g{s}'
    o += [d0, d1, l0, l1]
    o.append(I(f's_add_u32 s{S_A}, s{S_A}, 16384'))
    if (s & 3) == 3:
        o.append(I(f's_add_u32 s{S_B0}, s{S_B0}, 4096'))
        o.append(I(f's_add_u32 s{S_B1}, s{S_B1}, 4096'))
    return o

def treads(s):
    buf = V_AF + 8 * (s & 1)
    off = (s % D) * 2048
    return [I(f'ds_read_b64_tr_b16 {vr(buf + 4*t + 2*j, 2)}, v{V_TR+t} offset:{off + j*1024}') for t in range(2) for j in range(2)]

def gen_k3():
    a = Asm()
    ST = lambda: stamp(a, 0, 100, 30)
    a(f'''
.p2align 8
.globl outp_kernel
.type outp_kernel,@function
outp_kernel:
s_cmp_ge_u32 s2, 256
s_cbranch_scc1 L_k3_end
s_load_dwordx2 s[{SRD_WO}:{SRD_WO+1}], s[0:1], 40
s_load_dwordx2 s[{SRD_WB}:{SRD_WB+1}], s[0:1], 64
s_load_dwordx2 s[{SRD_OUT}:{SRD_OUT+1}], s[0:1], 80
s_load_dwordx2 s[{SRD_WS}:{SRD_WS+1}], s[0:1], 96
v_and_b32 v{V_LANE}, 63, v0
v_lshrrev_b32 v{V_T}, 6, v0
v_lshlrev_b32 v{V_L16}, 4, v{V_LANE}
v_readfirstlane_b32 s{S_WAVE}, v{V_T}
s_and_b32 s{S_T0}, s2, 7
s_lshr_b32 s{S_T1}, s2, 3
s_and_b32 s{S_QT}, s{S_T1}, 3
s_lshl_b32 s{S_T0}, s{S_T0}, 2
s_add_u32 s{S_QT}, s{S_QT}, s{S_T0}
s_lshr_b32 s{S_MT}, s{S_T1}, 2
s_mov_b32 s{SRD_WS+2}, {WS_SIZE}
s_mov_b32 s{SRD_WS+3}, 0x20000
s_mov_b32 s{SRD_WO+2}, {4096*1024}
s_mov_b32 s{SRD_WO+3}, 0x20000
s_mov_b32 s{SRD_WB+2}, {512*1024}
s_mov_b32 s{SRD_WB+3}, 0x20000
s_mov_b32 s{SRD_OUT+2}, {2048*1024}
s_mov_b32 s{SRD_OUT+3}, 0x20000
v_lshrrev_b32 v{V_T}, 3, v{V_LANE}
v_and_b32 v{V_T+1}, 7, v{V_LANE}
v_bfe_u32 v{V_T+2}, v{V_LANE}, 4, 1
v_lshlrev_b32 v{V_T+2}, 2, v{V_T+2}
v_xor_b32 v{V_T+1}, v{V_T+1}, v{V_T+2}
v_lshlrev_b32 v{V_T+1}, 4, v{V_T+1}
v_lshl_add_u32 v{V_W}, v{V_T}, 10, v{V_T+1}
s_lshl_b32 s{S_LB}, s{S_WAVE}, 14
s_lshl_b32 s{S_T0}, s{S_WAVE}, 19
s_lshl_b32 s{S_T1}, s{S_MT}, 7
s_add_u32 s{S_A}, s{S_T0}, s{S_T1}
s_mul_i32 s{S_B0}, s{S_QT}, {2*288*1024}
s_lshl_b32 s{S_T0}, s{S_WAVE}, 15
s_add_u32 s{S_B0}, s{S_B0}, s{S_T0}
s_add_u32 s{S_B0}, s{S_B0}, {CF_BASE}
s_add_u32 s{S_B1}, s{S_B0}, {288*1024}
s_waitcnt lgkmcnt(0)
''')
    stamp_init(a, 0, 100); ST(); stamp_rt(a, 0, 62, 30)
    seq = []
    for s in range(D): seq += loads(s)
    seq += [I(x) for x in f'''v_lshrrev_b32 v{V_T}, 5, v{V_LANE}
v_bfe_u32 v{V_T+1}, v{V_LANE}, 2, 2
v_lshl_add_u32 v{V_T}, v{V_T}, 2, v{V_T+1}
v_lshlrev_b32 v{V_T}, 7, v{V_T}
v_bfe_u32 v{V_T+1}, v{V_LANE}, 3, 1
v_lshl_add_u32 v{V_T}, v{V_T+1}, 6, v{V_T}
v_bfe_u32 v{V_T+1}, v{V_LANE}, 4, 1
v_lshl_add_u32 v{V_T}, v{V_T+1}, 5, v{V_T}
v_and_b32 v{V_T+1}, 3, v{V_LANE}
v_lshl_add_u32 v{V_T}, v{V_T+1}, 3, v{V_T}
v_add_u32 v{V_TR}, s{S_LB}, v{V_T}
v_xor_b32 v{V_TR+1}, 64, v{V_TR}'''.split('\n')]
    seq.append(Pseudo('WAITVM', 'g0'))
    seq += treads(0)
    for s in range(NK):
        if s + 1 < NK:
            seq.append(Pseudo('WAITVM', f'g{s+1}'))
            seq += treads(s + 1)
        af = V_AF + 8 * (s & 1); b = V_B + 8 * (s % D)
        for mt in range(2):
            for qt in range(2):
                acc = V_ACC + 16 * (mt * 2 + qt)
                seq.append(MF(acc, af + 4 * mt, b + 4 * qt, '0' if s == 0 else vr(acc, 16)))
        if s + D < NK: seq += loads(s + D)
    seq, lg, vm = auto_waits(seq)
    assert not lg and not vm
    a.add(seq)
    ST()
    seq = [I(f'v_add_u32 v{V_T}, s{S_LB}, v{V_L16}')]
    for o in range(1, 8): seq.append(I(f'v_xor_b32 v{V_T+o}, {o*16}, v{V_T}'))
    seq.append(I('s_nop 3'))
    for t in range(4):
        mt = t >> 1
        for jq in range(4):
            seq.append(I(f'ds_write_b128 v{V_T + mt*4 + jq}, {vr(V_ACC + 16*t + 4*jq, 4)} offset:{t*4096 + jq*1024}'))
            if (t * 4 + jq) % 8 == 7: seq.append(Pseudo('WAITLG', None))
    seq += [I(x) for x in f'''v_and_b32 v{V_T}, 7, v{V_LANE}
v_lshrrev_b32 v{V_T+1}, 3, v{V_LANE}
s_and_b32 s{S_T0}, s{S_WAVE}, 3
s_lshl_b32 s{S_T0}, s{S_T0}, 3
v_add_u32 v{V_T+2}, s{S_T0}, v{V_T+1}
v_xor_b32 v{V_T+2}, v{V_T+2}, v{V_T}
v_lshlrev_b32 v{V_T+2}, 4, v{V_T+2}
v_and_b32 v{V_T+3}, 3, v{V_T}
v_lshl_add_u32 v{V_T+2}, v{V_T+3}, 10, v{V_T+2}
v_lshrrev_b32 v{V_T+3}, 2, v{V_T}
v_lshl_add_u32 v{V_T+2}, v{V_T+3}, 13, v{V_T+2}
s_lshr_b32 s{S_T0}, s{S_WAVE}, 2
s_lshl_b32 s{S_T0}, s{S_T0}, 12
v_add_u32 v{V_T+2}, s{S_T0}, v{V_T+2}
v_add_u32 v{V_T+3}, {65536}, v{V_T+2}
v_lshlrev_b32 v{V_T+4}, 4, v{V_T}
v_lshl_add_u32 v{V_T+4}, v{V_T+1}, 10, v{V_T+4}
s_lshl_b32 s{S_T0}, s{S_QT}, 16
s_lshl_b32 s{S_T1}, s{S_WAVE}, 13
s_add_u32 s{S_T0}, s{S_T0}, s{S_T1}
s_lshl_b32 s{S_T1}, s{S_MT}, 7
s_add_u32 s{S_T0}, s{S_T0}, s{S_T1}'''.split('\n')]
    seq.append(Pseudo('WAITLG', None))
    seq.append(I('s_barrier'))
    R = V_B
    rds = []
    for src in range(8):
        ad = V_T + 2 + (src >> 2)
        o = (src & 3) * 16384
        rds.append(I(f'ds_read_b128 {vr(R + 8*src, 4)}, v{ad} offset:{o}'))
        rds.append(I(f'ds_read_b128 {vr(R + 8*src + 4, 4)}, v{ad} offset:{o + 512}'))
    seq += rds[:12]
    for src in range(1, 8):
        if src in (1, 2): seq += rds[12 + 2*(src-1): 14 + 2*(src-1)]
        for i in range(8):
            seq.append(I(f'v_add_f32 v{R+i}, v{R+i}, v{R+8*src+i}'))
    for i in range(4):
        seq.append(I(f'v_cvt_pk_bf16_f32 v{R+i}, v{R+2*i}, v{R+2*i+1}'))
    seq.append(I(f'buffer_store_dwordx4 {vr(R,4)}, v{V_T+4}, s[{SRD_OUT}:{SRD_OUT+3}], s{S_T0} offen'))
    seq, lg, vm = auto_waits(seq)
    a.add(seq)
    if STAMP:
        a('s_waitcnt vmcnt(0)'); ST(); stamp_rt(a, 0, 63, 30); stamp_store(a, 0, V_T, V_LANE, SRD_WS, S_WAVE, 30, 2)
    a('L_k3_end:')
    a('s_waitcnt vmcnt(0)')
    a('s_endpgm')
    return a

K3_LAUNCH = '; @launch kernel=outp_kernel grid=(256,1,1) block=(512,1,1) lds=131072'
K3_DESC = '''
.amdhsa_kernel outp_kernel
  .amdhsa_next_free_vgpr 256
  .amdhsa_next_free_sgpr 102
  .amdhsa_accum_offset 256
  .amdhsa_group_segment_fixed_size 0
  .amdhsa_kernarg_size 104
  .amdhsa_user_sgpr_count 2
  .amdhsa_user_sgpr_kernarg_segment_ptr 1
  .amdhsa_system_sgpr_workgroup_id_x 1
.end_amdhsa_kernel
'''
```

```python
MB = 1 << 20
KV_BASE = 0
QP_BASE = 32 * MB
XF_BASE = 40 * MB
WF_BASE = 44 * MB
CF_BASE = 64 * MB
P_BASE = 96 * MB
G_BASE = 97 * MB
WS_SIZE = 268435456
LOG2E = 1.4426950408889634
QSCALE = LOG2E / (128 ** 0.5)
import struct
def f2u(x): return struct.unpack('<I', struct.pack('<f', x))[0]
```

```python
import sys, importlib
from core import *
import k1
NAME = 'gated_mix__compressed_kv_cla__linear_attn_block__prompt'
HDR = open('cdna_kernels/' + NAME + '.s.ref').read().split('; Override launch')[0]

def build(kernels=('k1', 'k2', 'k3')):
    launches = []; bodies = []; descs = []; data = []
    if 'k1' in kernels:
        a = k1.gen_k1(); bodies.append(('k1', a)); descs.append(k1.K1_DESC)
        launches.append('; @launch kernel=proj_kernel grid=(256,1,1) block=(512,1,1) lds=163840')
        w = k1.k1_table()
        data.append('.p2align 6\nk1_table:\n' + '\n'.join('.long ' + ', '.join(str(x) for x in w[i:i+8]) for i in range(0, len(w), 8)) + '\n')
    if 'k2' in kernels:
        import k2
        a = k2.gen_k2(); bodies.append(('k2', a)); descs.append(k2.K2_DESC)
        launches.append('; @launch kernel=attn_kernel grid=(256,1,1) block=(512,1,1) lds=163840')
    if 'k3' in kernels:
        import k3
        a = k3.gen_k3(); bodies.append(('k3', a)); descs.append(k3.K3_DESC)
        launches.append(k3.K3_LAUNCH)
    nerr = 0
    for n, a in bodies:
        for e in check_hazards(a.ins, n):
            print('HAZARD', e); nerr += 1
        print(n, 'instructions:', sum(1 for i in a.ins if i.states), file=sys.stderr)
    out = HDR + '\n'.join(launches) + '\n.amdgcn_target "amdgcn-amd-amdhsa--gfx950"\n.text\n'
    for n, a in bodies: out += a.text()
    out += '.section .rodata,"a"\n' + ''.join(data)
    for d in descs: out += '.p2align 6' + d
    return out, nerr

if __name__ == '__main__':
    ks = sys.argv[2].split(',') if len(sys.argv) > 2 else ('k1', 'k2', 'k3')
    txt, nerr = build(ks)
    open(sys.argv[1], 'w').write(txt)
    print('hazard errors:', nerr)
```

```python
import re

def _regs(tok):
    tok = tok.strip()
    neg = tok.startswith('-')
    if neg: tok = tok[1:]
    m = re.fullmatch(r'abs\((.*)\)', tok) or re.fullmatch(r'\|(.*)\|', tok)
    if m: tok = m.group(1)
    m = re.fullmatch(r'([vsa])(\d+)', tok)
    if m: return [(m.group(1), int(m.group(2)))]
    m = re.fullmatch(r'([vsa])\[(\d+):(\d+)\]', tok)
    if m: return [(m.group(1), i) for i in range(int(m.group(2)), int(m.group(3)) + 1)]
    if tok in ('vcc', 'exec', 'm0', 'scc'): return [('x', tok)]
    if tok in ('vcc_lo', 'vcc_hi'): return [('x', 'vcc')]
    if tok in ('exec_lo', 'exec_hi'): return [('x', 'exec')]
    return []

TRANS = ('v_exp_f32', 'v_log_f32', 'v_rcp_f32', 'v_rsq_f32', 'v_sqrt_f32', 'v_sin_f32', 'v_cos_f32')

class Ins:
    __slots__ = ('text', 'op', 'kind', 'w', 'r', 'states', 'mf', 'srcc', 'ab', 'tag', 'wide_store', 'dpp')
    def __init__(self, text):
        self.text = text
        t = text.split(';')[0].strip()
        self.tag = None; self.mf = 0; self.srcc = set(); self.ab = set(); self.wide_store = False; self.dpp = False
        self.w = set(); self.r = set(); self.states = 1
        if t.endswith(':') or t == '' or t.startswith('.'):
            self.op = ''; self.kind = 'label' if t.endswith(':') else 'none'; self.states = 0
            return
        parts = t.split(None, 1)
        op = parts[0]; self.op = op
        if op.endswith('_e64'): op = op[:-4]
        rest = parts[1] if len(parts) > 1 else ''
        ops = []; cur = ''; depth = 0
        for ch in rest:
            if ch == '[': depth += 1
            if ch == ']': depth -= 1
            if ch == ',' and depth == 0:
                ops.append(cur.strip()); cur = ''
            else: cur += ch
        if cur.strip(): ops.append(cur.strip())
        mods = ''
        if ops:
            sp = ops[-1].split(None, 1)
            ops[-1] = sp[0]
            if len(sp) > 1: mods = sp[1]
        R = lambda i: set(_regs(ops[i])) if i < len(ops) else set()
        allr = lambda a: set().union(*[R(i) for i in range(a, len(ops))]) if len(ops) > a else set()
        if op.startswith('v_mfma'):
            self.kind = 'mfma'
            self.mf = 8 if '32x32x16' in op else (4 if '16x16x32' in op else 2)
            self.w = R(0); self.ab = R(1) | R(2); self.srcc = R(3); self.r = self.ab | self.srcc
        elif op.startswith('v_'):
            self.kind = 'trans' if op.replace('_e32', '').replace('_e64', '') in TRANS else 'valu'
            if 'dpp' in op or 'quad_perm' in mods or 'row_' in mods: self.dpp = True
            if op.startswith('v_cmp'):
                self.w = R(0); self.r = allr(1)
            elif op.startswith('v_permlane'):
                self.w = R(0) | R(1); self.r = R(0) | R(1)
            elif op.startswith(('v_add_co', 'v_sub_co', 'v_addc_co', 'v_subb_co')):
                self.w = R(0) | R(1); self.r = allr(2)
            else:
                self.w = R(0); self.r = allr(1)
                if op.startswith(('v_fmac', 'v_dot2c', 'v_pk_fmac', 'v_mac')): self.r |= R(0)
                if op.startswith('v_cndmask') and len(ops) == 3: self.r.add(('x', 'vcc'))
        elif op.startswith('ds_'):
            if op.startswith(('ds_read', 'ds_bpermute', 'ds_permute', 'ds_swizzle')):
                self.kind = 'ds_r'; self.w = R(0); self.r = allr(1)
            else:
                self.kind = 'ds_w'; self.r = allr(0)
        elif op.startswith(('buffer_', 'global_')):
            if 'lds' in mods.split() or '_lds_' in op:
                self.kind = 'dma'; self.r = allr(0) | {('x', 'm0')}
            elif '_load' in op:
                self.kind = 'vld'; self.w = R(0); self.r = allr(1)
            else:
                self.kind = 'vst'; self.r = allr(0)
                if 'x4' in op or 'x3' in op:
                    self.wide_store = True
                    self.ab = R(0) if op.startswith('buffer_') else R(1)
        elif op == 's_nop':
            self.kind = 'nop'; self.states = int(ops[0], 0) + 1
        elif op in ('s_waitcnt', 's_barrier', 's_setprio', 's_endpgm', 's_sleep'):
            self.kind = 'ctl'
        elif op.startswith(('s_branch', 's_cbranch', 's_setpc')):
            self.kind = 'branch'
        elif op.startswith('s_load') or op.startswith('s_buffer_load') or op.startswith('s_mem'):
            self.kind = 'smem'; self.w = R(0); self.r = allr(1)
        elif op.startswith('s_'):
            self.kind = 'salu'
            if op.startswith(('s_cmp', 's_bitcmp')):
                self.r = allr(0)
            else:
                self.w = R(0); self.r = allr(1)
                if 'saveexec' in op: self.w.add(('x', 'exec'))
        else:
            raise ValueError('unknown op ' + text)

class Asm:
    def __init__(self):
        self.ins = []
    def __call__(self, text, tag=None):
        for line in text.strip('\n').split('\n'):
            i = Ins(line.strip()); i.tag = tag
            self.ins.append(i)
    def add(self, ins_list):
        self.ins.extend(ins_list)
    def text(self):
        out = []
        for i in self.ins:
            if i.kind in ('label', 'none'): out.append(i.text)
            else: out.append('    ' + i.text)
        return '\n'.join(out) + '\n'

def I(text):
    return Ins(text)

def check_hazards(ins, name=''):
    errs = []
    hist = []
    pos = 0
    MF_RAW = {8: 12, 4: 8, 2: 5}
    MF_OVL = {8: 10, 4: 6, 2: 4}
    MF_WAR = {8: 7, 4: 3, 2: 1}
    for idx, c in enumerate(ins):
        if c.kind in ('label', 'none'): continue
        for (p, ppos) in reversed(hist):
            d = pos - ppos - p.states
            if d >= 20: break
            need = 0; why = ''
            pv = p.kind in ('valu', 'trans')
            cv = c.kind in ('valu', 'trans')
            vw = {x for x in p.w if x[0] in 'va'}
            sw = {x for x in p.w if x[0] in 'sx'}
            if pv and c.kind == 'mfma' and (vw & c.r): need, why = 2, 'valu->mfma'
            if p.kind == 'mfma':
                if c.kind == 'mfma':
                    if p.w & c.ab: need, why = MF_RAW[p.mf], 'mfma D->AB'
                    elif p.w & c.srcc:
                        if p.w == c.srcc and p.mf == c.mf: need = 2 if p.mf == 2 else 0
                        else: need, why = MF_OVL[p.mf], 'mfma D->C overlap'
                    elif p.w & c.w: need, why = MF_OVL[p.mf], 'mfma D WAW (conservative)'
                elif cv or c.kind in ('ds_r', 'ds_w', 'vld', 'vst', 'dma'):
                    if p.w & (c.r | c.w): need, why = MF_RAW[p.mf], 'mfma D->valu/mem'
                    elif cv and (p.srcc & c.w): need, why = MF_WAR[p.mf], 'mfma C WAR'
            if p.kind == 'trans' and c.kind == 'valu' and (vw & c.r): need, why = max(need, 1), 'trans->valu'
            if pv and sw:
                if cv and (sw & c.r): need, why = max(need, 2), 'valu sgpr->valu'
                if c.kind in ('vld', 'vst', 'dma') and (sw & c.r): need, why = max(need, 5), 'valu sgpr->vmem'
            if pv and c.op.startswith(('v_readfirstlane', 'v_readlane')) and (vw & c.r): need, why = max(need, 1), 'valu->readlane'
            if pv and c.op.startswith('v_permlane') and (vw & c.r): need, why = max(need, 2), 'valu->permlane'
            if pv and c.dpp and (vw & c.r): need, why = max(need, 2), 'valu->dpp'
            if p.kind == 'salu' and ('x', 'm0') in p.w and c.kind == 'dma': need, why = max(need, 1), 'm0->dma'
            if p.wide_store and (p.ab & c.w) and c.kind != 'mfma': need, why = max(need, 2), 'store data WAR'
            if p.wide_store and (p.ab & c.w) and c.kind == 'mfma': need, why = max(need, 2), 'store data WAR(mfma)'
            if d < need:
                errs.append(f'{name}: [{idx}] "{c.text}" needs {need} after "{p.text}" has {d} ({why})')
        hist.append((c, pos)); pos += c.states
        if len(hist) > 40: hist.pop(0)
        if c.op in ('s_branch', 's_endpgm', 's_setpc_b64'): hist = []
    return errs

class LgkmTracker:
    def __init__(self):
        self.q = []
    def issue(self, tag):
        self.q.append(tag)
    def wait_for(self, tags):
        if isinstance(tags, str): tags = [tags]
        last = -1
        for i, t in enumerate(self.q):
            if t in tags: last = i
        if last < 0: return None
        n = len(self.q) - 1 - last
        self.q = self.q[last + 1:]
        assert n <= 15, n
        return f's_waitcnt lgkmcnt({n})'
    def drain(self):
        self.q = []
        return 's_waitcnt lgkmcnt(0)'

def vr(a, n=1):
    return f'v{a}' if n == 1 else f'v[{a}:{a+n-1}]'
def sr(a, n=1):
    return f's{a}' if n == 1 else f's[{a}:{a+n-1}]'

class Pseudo(Ins):
    def __init__(self, what, tag):
        Ins.__init__(self, '; pseudo')
        self.kind = what; self.tag = tag; self.states = 0

def auto_waits(ins, lg=None, vm=None):
    lg = list(lg or []); vm = list(vm or [])
    out = []
    def lgwait(last):
        nonlocal lg
        if any(x.kind == 'smem' for x in lg[:last + 1]) :
            out.append(Ins('s_waitcnt lgkmcnt(0)')); lg = []
            return
        rest = lg[last + 1:]
        n = sum(1 for x in rest if x.kind != 'smem')
        assert n <= 15, ('lgkm overflow', n)
        out.append(Ins(f's_waitcnt lgkmcnt({n})')); lg = rest
    def vmwait(last):
        nonlocal vm
        n = len(vm) - 1 - last
        assert n <= 63
        out.append(Ins(f's_waitcnt vmcnt({n})')); vm = vm[last + 1:]
    for c in ins:
        if c.kind == 'WAITVM':
            last = max([i for i, x in enumerate(vm) if x.tag == c.tag], default=-1)
            if last >= 0: vmwait(last)
            continue
        if c.kind == 'WAITLG':
            last = max([i for i, x in enumerate(lg) if (c.tag is None or x.tag == c.tag)], default=-1)
            if last >= 0: lgwait(last)
            continue
        if c.op == 's_waitcnt':
            m = re.search(r'lgkmcnt\((\d+)\)', c.text)
            if m:
                n = int(m.group(1))
                if n == 0: lg = []
                else:
                    keep = []; cnt = 0
                    for x in reversed(lg):
                        if x.kind == 'smem': keep.append(x)
                        elif cnt < n: keep.append(x); cnt += 1
                    lg = list(reversed(keep))
            m = re.search(r'vmcnt\((\d+)\)', c.text)
            if m:
                n = int(m.group(1)); vm = vm[len(vm) - n:] if n > 0 else []
            out.append(c); continue
        touch = c.r | c.w
        last = max([i for i, x in enumerate(lg) if x.w & touch], default=-1)
        if last >= 0: lgwait(last)
        last = max([i for i, x in enumerate(vm) if x.w & touch], default=-1)
        if last >= 0: vmwait(last)
        if c.kind in ('ds_r', 'ds_w') and sum(1 for x in lg if x.kind != 'smem') >= 15:
            lgwait(min(i for i, x in enumerate(lg) if x.kind != 'smem'))
        out.append(c)
        if c.kind in ('ds_r', 'ds_w', 'smem'):
            lg.append(c)
            if sum(1 for x in lg if x.kind != 'smem') > 15:
                raise AssertionError('more than 15 LDS ops outstanding at ' + c.text)
        if c.kind in ('vld', 'vst', 'dma'):
            vm.append(c)
            assert len(vm) <= 63
    return out, lg, vm

def interleave(main, fillers, start=0, end=None):
    n = len(main)
    if end is None: end = n
    out = []
    nf = len(fillers); span = end - start
    k = 0
    for s in range(n):
        out.extend(main[s])
        if start <= s < end:
            tgt = ((s - start + 1) * nf + span - 1) // span
            while k < tgt:
                f = fillers[k]; k += 1
                if isinstance(f, list): out.extend(f)
                else: out.append(f)
    assert k == nf
    return out

import os
STAMP = bool(os.environ.get('STAMP'))
DBG_BASE = 98 << 20
def stamp_init(a, vreg, scnt):
    if not STAMP: return
    a(f'v_mov_b32 v{vreg}, 0\ns_mov_b32 s{scnt}, 0')
def stamp(a, vreg, scnt, st):
    if not STAMP: return
    a(f's_memtime s[{st}:{st+1}]\ns_mov_b32 m0, s{scnt}\ns_waitcnt lgkmcnt(0)\nv_writelane_b32 v{vreg}, s{st}, m0\ns_add_u32 s{scnt}, s{scnt}, 1')
    if os.environ.get('STAMPRT'):
        a(f's_memrealtime s[{st}:{st+1}]\ns_add_u32 m0, s{scnt}, 31\ns_waitcnt lgkmcnt(0)\nv_writelane_b32 v{vreg}, s{st}, m0')
def stamp_store(a, vreg, vtmp, vlane, srd, swave, st, kidx):
    if not STAMP: return
    a(f'''s_lshl_b32 s{st}, s2, 3
s_add_u32 s{st}, s{st}, s{swave}
s_lshl_b32 s{st}, s{st}, 8
s_add_u32 s{st}, s{st}, {DBG_BASE + kidx * (1 << 19)}
v_lshlrev_b32 v{vtmp}, 2, v{vlane}
buffer_store_dword v{vreg}, v{vtmp}, s[{srd}:{srd+3}], s{st} offen''')

def stamp_rt(a, vreg, lane, st):
    if not STAMP: return
    a(f's_memrealtime s[{st}:{st+1}]\ns_waitcnt lgkmcnt(0)\nv_writelane_b32 v{vreg}, s{st}, {lane}')
```

```python
from core import *
import os
from layout import *


S_X, S_CKV, S_WQ, S_WUK, S_WUV, S_WO, S_WQKV, S_WOB, S_GATE, S_WS = 4, 6, 8, 10, 12, 14, 18, 20, 22, 28
SRD_A, SRD_W, SRD_WS, SRD_G = 32, 36, 40, 44
S_RB, S_SLOT, S_WAVE, S_G0, S_NG, S_T0, S_T1, S_AOFF, S_COL, S_OUT, S_W8, S_W4, S_ALB, S_L2E, S_EPS, S_OUT2, S_W64 = range(48, 65)
S_MLO = 66
S_ROT, S_H0, S_H1, S_QSC, S_WE, S_AE = 68, 69, 70, 71, 72, 80
V_LANE, V_W, V_AD, V_ST, V_TR, V_AR, V_SCA, V_SCB, V_RED, V_TCH = 1, 2, 3, 4, 5, 9, 11, 12, 13, 14
V_ONES = 16
V_T = 24
V_WB = 40
V_X, V_Y, V_A = 64, 96, 128
STG_O, SCR, STG_E = 0, 64 * 1024, 96 * 1024

RM = [int(x) for x in os.environ.get('K1_RM', '2,1,0').split(',')]
def L(txt): return [I(x) for x in txt.strip('\n').split('\n')]

def mfma(acc, wfrag, afrag, ntype, first):
    c = '0' if first else vr(acc, 16)
    if ntype: return I(f'v_mfma_f32_32x32x16_bf16 {vr(acc,16)}, {vr(afrag,4)}, {vr(wfrag,4)}, {c}')
    return I(f'v_mfma_f32_32x32x16_bf16 {vr(acc,16)}, {vr(wfrag,4)}, {vr(afrag,4)}, {c}')

class Path:
    def __init__(self, name, ntype, epi, stride, gcol):
        self.name, self.ntype, self.epi, self.stride, self.gcol = name, ntype, epi, stride, gcol

def dma(lds_sreg, lds_imm, vaddr, srd, soff_sreg, soff_imm, tag):
    o = [I(f's_add_u32 m0, s{lds_sreg}, {lds_imm}'), I(f's_add_u32 s{S_T0}, s{soff_sreg}, {soff_imm}')]
    d = I(f'buffer_load_dwordx4 v{vaddr}, s[{srd}:{srd+3}], s{S_T0} offen lds'); d.tag = tag
    return o + [d]

def a_slot(j):
    s = (j + 2) % 6
    if s < 4: return ('E', s * 2048)
    return ('S', (s - 4) * 2048)

def a_dma(j):
    reg, off = a_slot(j)
    o = []
    for i in range(2):
        if reg == 'E': o += dma(S_W8, STG_E + off + i * 1024, V_AD, SRD_A, S_AE + (j >> 1), i * 16384 + (j & 1) * 64, f'a{j}')
        else: o += dma(S_W4, SCR + off + i * 1024, V_AD, SRD_A, S_AE + (j >> 1), i * 16384 + (j & 1) * 64, f'a{j}')
    return o

def a_read(j):
    reg, off = a_slot(j)
    base = V_AR if reg == 'E' else V_AR + 1
    o = [Pseudo('WAITVM', f'a{j}')]
    o.append(I(f'ds_read_b128 {vr(V_A + 8*j, 4)}, v{base} offset:{off}'))
    o.append(I(f'ds_read_b128 {vr(V_A + 8*j + 4, 4)}, v{V_AX if reg == "E" else V_AX + 1} offset:{off}'))
    return o
V_AX = 20

def w1_dma(P, e):
    o = []
    for g in range(2):
        o += dma(S_ALB, (e % 4) * 16384 + g * 8192, V_W, SRD_W, S_WE + e, g * P.gcol, f'w{e}')
    return o

def wh_dma(P, m):
    g, hf = m >> 1, m & 1
    stg = STG_E if g % 2 == 0 else STG_O
    return [dma(S_W4, stg + hf * 32768 + i * 1024, V_W, SRD_W, S_H1 if hf else S_H0, i * 8 * P.stride + g * P.gcol, f'h{m}') for i in range(4)]

def w2_dma(P):
    return [dma(S_W8, STG_E + i * 1024, V_W, SRD_W, S_OUT2, i * 8 * P.stride + 2 * P.gcol, 'w2') for i in range(8)]

def tr_reads(buf, stage_e, off):
    base = V_TR + (2 if stage_e else 0)
    return [I(f'ds_read_b64_tr_b16 {vr(buf + 4*t + 2*j, 2)}, v{base+t} offset:{off + j*512}') for t in range(2) for j in range(2)]

def set_out(P, g):
    if P.epi == 'e1':
        base = KV_BASE + (16384 if P.ntype else 0)
        return L(f'''s_add_u32 s{S_T1}, s{S_G0}, {g}
s_lshr_b32 s{S_OUT}, s{S_T1}, 1
s_lshl_b32 s{S_OUT}, s{S_OUT}, 20
s_and_b32 s{S_T1}, s{S_T1}, 1
s_lshl_b32 s{S_T1}, s{S_T1}, 12
s_add_u32 s{S_OUT}, s{S_OUT}, s{S_T1}''') + ([I(f's_add_u32 s{S_OUT}, s{S_OUT}, {base}')] if base else [])
    if P.epi == 'bq':
        return L(f'''s_add_u32 s{S_T1}, s{S_G0}, {g}
s_lshr_b32 s{S_OUT}, s{S_T1}, 1
s_lshl_b32 s{S_OUT}, s{S_OUT}, 20
s_and_b32 s{S_T1}, s{S_T1}, 1
s_lshl_b32 s{S_T1}, s{S_T1}, 12
s_add_u32 s{S_OUT}, s{S_OUT}, s{S_T1}
s_add_u32 s{S_OUT}, s{S_OUT}, {QP_BASE + 16384}''')
    return L(f'''s_add_u32 s{S_T1}, s{S_G0}, {g}
s_lshl_b32 s{S_OUT}, s{S_T1}, 12
s_lshl_b32 s{S_T1}, s{S_RB}, 16
s_add_u32 s{S_OUT}, s{S_OUT}, s{S_T1}
s_add_u32 s{S_OUT}, s{S_OUT}, {P_BASE}''')

def store(src, q):
    return I(f'buffer_store_dwordx4 {vr(src, 4)}, v{V_ST}, s[{SRD_WS}:{SRD_WS+3}], s{S_OUT} offen offset:{q*1024} {os.environ.get("K1_ST", "")}')

def phi(a, t):
    return [I(f'v_mul_f32 v{t}, s{S_L2E}, v{a}'),
            I(f'v_max_f32 v{a}, 0, v{a}'),
            I(f'v_exp_f32 v{t}, v{t} clamp'),
            I(f'v_add_f32 v{a}, s{S_EPS}, v{a}'),
            I(f'v_add_f32 v{a}, v{t}, v{a}')]

def epi_cvt(z, dst, dophi, stores=True, scale=False):
    f = []
    for i in range(16):
        a = z + 2 * i
        if dophi: f += phi(a, V_TCH + 1) + phi(a + 1, 22)
        if scale: f += [I(f'v_mul_f32 v{a}, s{S_QSC}, v{a}'), I(f'v_mul_f32 v{a+1}, s{S_QSC}, v{a+1}')]
        f.append(I(f'v_cvt_pk_bf16_f32 v{dst+i}, v{a}, v{a+1}'))
        if stores and i % 4 == 3: f.append(store(dst + i - 3, i >> 2))
    return f

def epi_bkv_a(z):
    f = []
    for i in range(8):
        a = z + 16 + 2 * i
        f.append(I(f'v_cvt_pk_bf16_f32 v{V_T+8+i}, v{a}, v{a+1}'))
    for i in range(8):
        a = z + 2 * i
        f += phi(a, z + 16) + phi(a + 1, z + 17)
        f.append(I(f'v_cvt_pk_bf16_f32 v{V_T+i}, v{a}, v{a+1}'))
    f.append(I('s_nop 1'))
    f.append(I(f'v_mfma_f32_32x32x16_bf16 {vr(z,16)}, {vr(V_T,4)}, {vr(V_T+8,4)}, 0'))
    f.append(I(f'v_mfma_f32_32x32x16_bf16 {vr(z+16,16)}, {vr(V_T,4)}, {vr(V_ONES,4)}, 0'))
    f.append(I(f'v_mfma_f32_32x32x16_bf16 {vr(z,16)}, {vr(V_T+4,4)}, {vr(V_T+12,4)}, {vr(z,16)}'))
    f.append(I(f'v_mfma_f32_32x32x16_bf16 {vr(z+16,16)}, {vr(V_T+4,4)}, {vr(V_ONES,4)}, {vr(z+16,16)}'))
    f.append(I('s_nop 7')); f.append(I('s_nop 3'))
    for i in range(8):
        f.append(I(f'v_cndmask_b32 v{V_T+i}, v{z+16+i}, v{z+i}, s[{S_MLO}:{S_MLO+1}]'))
    for i in range(8):
        f.append(I(f'v_cndmask_b32 v{V_T+8+i}, v{z+8+i}, v{z+24+i}, s[{S_MLO}:{S_MLO+1}]'))
    return f

def epi_bkv_w():
    return [I(f'ds_write_b128 v{V_SCA}, {vr(V_T,4)}'),
            I(f'ds_write_b128 v{V_SCA}, {vr(V_T+4,4)} offset:16'),
            I(f'ds_write_b128 v{V_SCB}, {vr(V_T+8,4)}'),
            I(f'ds_write_b128 v{V_SCB}, {vr(V_T+12,4)} offset:16')]

def reduce_code(P, g):
    seq = set_out(P, g)
    for w in range(8):
        seq.append(I(f'ds_read_b64 {vr(V_T+2*w,2)}, v{V_RED} offset:{w*4096}'))
    for w in range(1, 8):
        seq.append(I(f'v_add_f32 v{V_T}, v{V_T}, v{V_T+2*w}'))
        seq.append(I(f'v_add_f32 v{V_T+1}, v{V_T+1}, v{V_T+2*w+1}'))
    seq.append(I(f'v_subrev_u32 v{V_T+2}, {SCR}, v{V_RED}'))
    seq.append(I(f'buffer_store_dwordx2 {vr(V_T,2)}, v{V_T+2}, s[{SRD_WS}:{SRD_WS+3}], s{S_OUT} offen'))
    return seq

def touch_code():
    G = SRD_G
    return L(f'''s_cmp_lt_u32 s{S_WAVE}, 2
s_cselect_b64 s[{G}:{G+1}], s[{S_WO}:{S_WO+1}], s[{S_WQ}:{S_WQ+1}]
s_cmp_eq_u32 s{S_WAVE}, 4
s_cselect_b64 s[{G}:{G+1}], s[{S_WOB}:{S_WOB+1}], s[{G}:{G+1}]
s_cselect_b32 s{S_T1}, 5, 7
s_cmp_lt_u32 s{S_WAVE}, 5
s_cselect_b32 s{G+2}, {512*1024}, 0
s_cmp_lt_u32 s{S_WAVE}, 4
s_cselect_b32 s{G+2}, {4096*1024}, s{G+2}
s_lshl_b32 s{S_T0}, s2, 1
s_and_b32 m0, s{S_WAVE}, 1
s_add_u32 s{S_T0}, s{S_T0}, m0
s_lshl_b32 s{S_T0}, s{S_T0}, 13
s_cmp_eq_u32 s{S_WAVE}, 4
s_cselect_b32 m0, 3, 0
s_lshr_b32 s{S_T0}, s{S_T0}, m0
v_lshlrev_b32 v{V_TCH}, s{S_T1}, v{V_LANE}
buffer_load_dword v{V_TCH}, v{V_TCH}, s[{G}:{G+3}], s{S_T0} offen''')

def stamp_ins():
    if not STAMP: return []
    t = Asm(); stamp(t, 0, 100, 30); return t.ins

def spread(slots, items):
    n = len(slots)
    add = [[] for _ in range(n)]
    for (s0, s1, fl) in items:
        nf = len(fl); span = s1 - s0; k = 0
        for s in range(s0, s1):
            tgt = ((s - s0 + 1) * nf + span - 1) // span
            while k < tgt:
                f = fl[k]; k += 1
                if isinstance(f, list): add[s].extend(f)
                else: add[s].append(f)
    out = []
    for s in range(n):
        out += slots[s] + add[s]
    return out

def bundles(flat):
    out = []; b = []
    for x in flat:
        b.append(x)
        if x.kind == 'dma': out.append(b); b = []
    assert not b
    return out

def rot_setup(P):
    o = [I(f's_mov_b32 s{S_W64}, s{S_T1}')]
    def chunk(e):
        return L(f'''s_add_u32 s{S_T0}, s{S_ROT}, {e}
s_and_b32 s{S_T0}, s{S_T0}, 7
s_mul_i32 s{S_WE+e}, s{S_T0}, {64*P.stride}
s_add_u32 s{S_WE+e}, s{S_WE+e}, s{S_COL}
s_lshl_b32 s{S_T0}, s{S_T0}, 7
s_add_u32 s{S_AE+e}, s{S_AOFF}, s{S_T0}''')
    for e in range(3): o += chunk(e)
    late = []
    for e in range(3, 8): late += chunk(e)
    late += L(f'''s_lshl_b32 s{S_T0}, s{S_ROT}, 1
s_add_u32 s{S_T0}, s{S_T0}, s{S_WAVE}
s_and_b32 s{S_T1}, s{S_T0}, 15
s_mul_i32 s{S_H0}, s{S_T1}, {32*P.stride}
s_add_u32 s{S_H0}, s{S_H0}, s{S_W64}
s_add_u32 s{S_T0}, s{S_T0}, 8
s_and_b32 s{S_T1}, s{S_T0}, 15
s_mul_i32 s{S_H1}, s{S_T1}, {32*P.stride}
s_add_u32 s{S_H1}, s{S_H1}, s{S_W64}
s_add_u32 s{S_T0}, s{S_ROT}, s{S_WAVE}
s_and_b32 s{S_T0}, s{S_T0}, 7
s_mul_i32 s{S_OUT2}, s{S_T0}, {64*P.stride}
s_add_u32 s{S_OUT2}, s{S_OUT2}, s{S_W64}''')
    P.late2 = late
    return o

def gen_path(P):
    nt = P.ntype
    seq = []
    seq += w1_dma(P, 0) + a_dma(0) + a_dma(1)
    seq += P.late_init + P.late2
    if os.environ.get('K1_SLEEP'): seq.append(I('s_sleep ' + os.environ['K1_SLEEP']))
    seq += w1_dma(P, 1) + a_dma(2) + a_dma(3)
    seq += a_read(0) + a_read(1)
    NB = 5
    RD0 = int(os.environ.get('K1_RD0', '10'))
    units = [(e, s, g) for e in range(8) for s in range(4) for g in range(2)]
    def urd(u):
        e, s, g = units[u]
        return tr_reads(V_T + 8 * (u % NB), False, (e % 4) * 16384 + g * 8192 + s * 2048)
    w2 = w2_dma(P)
    for e in range(8):
        seq.append(Pseudo('WAITVM', f'w{min(e + 1, 7)}' if e else 'w0'))
        seq.append(I('s_barrier'))
        seq += stamp_ins()
        if e <= 1: seq += urd(8 * e) + urd(8 * e + 1)
        slots = []
        for uu in range(8):
            u = 8 * e + uu
            _, s, g = units[u]
            ks = 4 * e + s
            acc = V_X if g == 0 else V_Y
            buf = V_T + 8 * (u % NB)
            s0 = []
            if u + 2 < 64 and u + 2 not in (8, 9): s0 += urd(u + 2)
            s0.append(mfma(acc, buf, V_A + 4 * ks, nt, ks == 0))
            slots.append(s0)
            slots.append([mfma(acc + 16, buf + 4, V_A + 4 * ks, nt, ks == 0)])
        items = []
        nx = []
        if e == 0: nx += bundles(w1_dma(P, 2))
        elif e <= 4: nx += bundles(w1_dma(P, e + 3))
        if 2 * e + 4 < 16: nx += bundles(a_dma(2 * e + 4) + a_dma(2 * e + 5))
        if e == 0: nx += bundles(w1_dma(P, 3))
        if e == 5: nx += w2[:4]
        if e == 6: nx += w2[4:] + wh_dma(P, 6)
        if nx:
            nx[0] = [Pseudo('WAITLG', 'ard')] + nx[0]
            items.append((0, RD0 - 1, nx))
        if e < 7:
            j = 2 * e + 2
            items.append((RD0, RD0 + 2, [a_read(j), a_read(j + 1)]))
        seq += spread(slots, items)
    for x in seq:
        if x.kind == 'ds_r' and x.op == 'ds_read_b128': x.tag = 'ard'
    seq += stamp_ins()
    seq += [I('s_nop 7')]
    pend = []
    if P.epi == 'e1':
        seq += epi_cvt(V_X, V_T, False, stores=False, scale=P.name == 'k')
        pend = set_out(P, 0) + [store(V_T + 4 * q, q) for q in range(4)]
    elif P.epi == 'bq':
        seq += epi_cvt(V_X, V_T, True, stores=False)
        pend = set_out(P, 0) + [store(V_T + 4 * q, q) for q in range(4)]
    else:
        seq += P.bkv_init + epi_bkv_a(V_X) + epi_bkv_w()
    seq.append(Pseudo('WAITVM', 'w2'))
    seq.append(Pseudo('WAITLG', None))
    ng = 5 if P.epi == 'e1' else 4
    def krd(gk):
        g, ks = gk >> 5, gk & 31
        return tr_reads(V_WB + 8 * (gk % 3), g % 2 == 0, ks * 2048)
    out_parts = []
    for n in range(4, 2 * ng):
        g, hf = n >> 1, n & 1
        acc, prev = (V_X, V_Y) if g % 2 == 0 else (V_Y, V_X)
        h = [I('s_barrier')] + stamp_ins()
        if n == 4: h += krd(64) + krd(65)
        slots = []
        for k in range(16):
            ks = hf * 16 + k; gk = g * 32 + ks
            buf = V_WB + 8 * (gk % 3)
            s0 = []
            if gk + 2 < ng * 32: s0 += krd(gk + 2)
            s0.append(mfma(acc, buf, V_A + 4 * ks, nt, ks == 0))
            slots.append(s0)
            slots.append([mfma(acc + 16, buf + 4, V_A + 4 * ks, nt, ks == 0)])
        items = []
        if n + 3 < 2 * ng: items.append((0, 16, wh_dma(P, n + 3)))
        if P.epi in ('e1', 'bq'):
            ep = set_out(P, g - 1) + epi_cvt(prev, prev, P.epi == 'bq', scale=P.name == 'k')
            if n == 4: items.append((2, 30, pend))
            elif n == 5: items.append((2, 30, ep))
            else:
                hl = len(ep) // 2
                items.append((2, 30, ep[:hl] if hf == 0 else ep[hl:]))
        else:
            if hf == 0: items.append((1, 30, reduce_code(P, g - 2) + epi_bkv_a(prev)))
            else: items.append((1, 8, epi_bkv_w()))
        if n == 4 and P.epi == 'bq':
            gd = L(f'''s_mov_b64 s[{SRD_G}:{SRD_G+1}], s[{S_GATE}:{S_GATE+1}]
s_mov_b32 s{SRD_G+2}, 1024
s_lshl_b32 s{S_T0}, s{S_ROT}, 3
v_add_u32 v{V_SCA}, s{S_T0}, v{V_LANE}
v_and_b32 v{V_SCA}, 63, v{V_SCA}
v_lshlrev_b32 v{V_SCA}, 4, v{V_SCA}
s_add_u32 m0, s{S_W4}, {SCR}
s_nop 0
buffer_load_dwordx4 v{V_SCA}, s[{SRD_G}:{SRD_G+3}], 0 offen lds''')
            items.append((20, 21, [gd]))
        h += spread(slots, items)
        nv = sum(1 for x in h if x.kind in ('vld', 'vst', 'dma') )
        if n + 1 < 2 * ng: h.append(I(f's_waitcnt vmcnt({nv})'))
        if P.epi == 'bkv' and hf == 1: h.append(Pseudo('WAITLG', 'scw'))
        for x in h:
            if x.kind == 'ds_w': x.tag = 'scw'
        seq += h
        if n == 7 and ng == 5:
            seq.append(I(f's_cmp_eq_u32 s{S_NG}, 4'))
            seq.append(I(f's_cbranch_scc1 L_k1_{P.name}_fin4'))
    last = V_X if ng == 5 else V_Y
    fin = stamp_ins() + [I('s_nop 7')]
    if P.epi in ('e1', 'bq'):
        fin += set_out(P, ng - 1) + epi_cvt(last, last, P.epi == 'bq', scale=P.name == 'k')
    else:
        fin += [I('s_barrier')] + reduce_code(P, 2) + [I('s_nop 0')] + epi_bkv_a(V_Y) + [I('s_barrier')] + epi_bkv_w() + [Pseudo('WAITLG', None), I('s_barrier')] + reduce_code(P, 3)
    seq += fin
    seq, lg, vm = auto_waits(seq)
    seq.append(I(f's_branch L_k1_{P.tail}'))
    if ng == 5:
        f4 = [I(f'L_k1_{P.name}_fin4:'), I('s_waitcnt lgkmcnt(0)')] + stamp_ins() + [I('s_nop 7')] + set_out(P, 3) + epi_cvt(V_Y, V_Y, False, scale=P.name == 'k')
        f4.append(I(f's_branch L_k1_{P.tail}'))
        seq += f4
    return seq

def gen_k1():
    a = Asm()
    a(f'''
.p2align 8
.globl proj_kernel
.type proj_kernel,@function
proj_kernel:
s_cmp_ge_u32 s2, 256
s_cbranch_scc1 L_k1_end
s_load_dwordx16 s[4:19], s[0:1], 0
s_load_dwordx4 s[20:23], s[0:1], 64
s_load_dwordx2 s[28:29], s[0:1], 96
v_and_b32 v{V_LANE}, 63, v0
v_lshrrev_b32 v{V_T}, 6, v0
s_lshr_b32 s{S_RB}, s2, 5
v_readfirstlane_b32 s{S_WAVE}, v{V_T}
s_and_b32 s{S_SLOT}, s2, 7
s_lshl_b32 s{S_SLOT}, s{S_SLOT}, 2
s_bfe_u32 s{S_T0}, s2, 0x20003
s_add_u32 s{S_SLOT}, s{S_SLOT}, s{S_T0}
s_mul_i32 s{S_ROT}, s{S_T0}, {RM[0]}
s_lshr_b32 s{S_T1}, s{S_RB}, {RM[2]}
s_mul_i32 s{S_T1}, s{S_T1}, {RM[1]}
s_add_u32 s{S_ROT}, s{S_ROT}, s{S_T1}
s_and_b32 s{S_ROT}, s{S_ROT}, 7
v_lshrrev_b32 v{V_T}, 3, v{V_LANE}
v_and_b32 v{V_T+1}, 7, v{V_LANE}
v_bfe_u32 v{V_T+2}, v{V_LANE}, 4, 1
v_lshlrev_b32 v{V_T+2}, 2, v{V_T+2}
v_xor_b32 v{V_T+1}, v{V_T+1}, v{V_T+2}
v_lshlrev_b32 v{V_T+2}, 4, v{V_T+1}
v_lshrrev_b32 v{V_T+3}, 2, v{V_T+1}
v_lshrrev_b32 v{V_T+4}, 2, v{V_LANE}
v_and_b32 v{V_T+5}, 3, v{V_LANE}
v_bfe_u32 v{V_T+6}, v{V_LANE}, 4, 2
v_xor_b32 v{V_T+5}, v{V_T+5}, v{V_T+6}
v_lshlrev_b32 v{V_T+5}, 4, v{V_T+5}
v_lshl_add_u32 v{V_AD}, v{V_T+4}, 10, v{V_T+5}
s_lshl_b32 s{S_T0}, s{S_RB}, 3
s_add_u32 s{S_T0}, s{S_T0}, s{S_WAVE}
s_lshl_b32 s{S_AOFF}, s{S_T0}, 15
s_lshl_b32 s{S_W8}, s{S_WAVE}, 13
s_lshl_b32 s{S_W4}, s{S_WAVE}, 12
s_lshl_b32 s{S_ALB}, s{S_WAVE}, 10
s_mov_b32 s{SRD_A+2}, {2048*1024}
s_mov_b32 s{SRD_A+3}, 0x20000
s_mov_b32 s{SRD_W+3}, 0x20000
s_mov_b32 s{SRD_WS+2}, {WS_SIZE}
s_mov_b32 s{SRD_WS+3}, 0x20000
s_mov_b32 s{SRD_G+3}, 0x20000
s_mov_b32 s{S_NG}, 5
''')
    late = L(f'''v_lshrrev_b32 v{V_X}, 5, v{V_LANE}
v_bfe_u32 v{V_X+1}, v{V_LANE}, 2, 2
v_lshl_add_u32 v{V_X}, v{V_X}, 3, v{V_X+1}
v_lshlrev_b32 v{V_X}, 7, v{V_X}
v_bfe_u32 v{V_X+1}, v{V_LANE}, 3, 1
v_lshl_add_u32 v{V_X}, v{V_X+1}, 6, v{V_X}
v_bfe_u32 v{V_X+1}, v{V_LANE}, 4, 1
v_lshl_add_u32 v{V_X}, v{V_X+1}, 5, v{V_X}
v_and_b32 v{V_X+1}, 3, v{V_LANE}
v_lshl_add_u32 v{V_TR}, v{V_X+1}, 3, v{V_X}
v_xor_b32 v{V_TR+1}, 64, v{V_TR}
v_add_u32 v{V_TR+2}, {STG_E}, v{V_TR}
v_add_u32 v{V_TR+3}, {STG_E}, v{V_TR+1}
v_and_b32 v{V_X}, 31, v{V_LANE}
v_bfe_u32 v{V_X+1}, v{V_LANE}, 2, 2
v_lshrrev_b32 v{V_X+2}, 5, v{V_LANE}
v_xor_b32 v{V_X+1}, v{V_X+1}, v{V_X+2}
v_lshlrev_b32 v{V_X+1}, 4, v{V_X+1}
v_lshl_add_u32 v{V_X}, v{V_X}, 6, v{V_X+1}
s_add_u32 s{S_T1}, s{S_W8}, {STG_E}
v_add_u32 v{V_AR}, s{S_T1}, v{V_X}
s_add_u32 s{S_T1}, s{S_W4}, {SCR}
v_add_u32 v{V_AR+1}, s{S_T1}, v{V_X}
v_xor_b32 v{V_AX}, 32, v{V_AR}
v_xor_b32 v{V_AX+1}, 32, v{V_AR+1}
s_lshr_b32 s{S_T1}, s{S_AOFF}, 16
s_lshl_b32 s{S_T1}, s{S_T1}, 15
s_bfe_u32 s{S_OUT}, s{S_AOFF}, 0x1000f
s_lshl_b32 s{S_OUT}, s{S_OUT}, 13
s_add_u32 s{S_T1}, s{S_T1}, s{S_OUT}
v_lshlrev_b32 v{V_ST}, 4, v{V_LANE}
v_add_u32 v{V_ST}, s{S_T1}, v{V_ST}
s_mov_b32 s{S_L2E}, {f2u(LOG2E):#x}
s_mov_b32 s{S_QSC}, {f2u(QSCALE):#x}
s_mov_b32 s{S_EPS}, {f2u(1e-6):#x}''')
    bkv_init = L(f'''v_mov_b32 v{V_ONES}, 0x3f803f80
v_mov_b32 v{V_ONES+1}, 0x3f803f80
v_mov_b32 v{V_ONES+2}, 0x3f803f80
v_mov_b32 v{V_ONES+3}, 0x3f803f80
v_and_b32 v{V_SCA}, 16, v{V_LANE}
v_cmp_eq_u32 s[{S_MLO}:{S_MLO+1}], 0, v{V_SCA}
s_add_u32 s{S_T0}, s{S_W4}, {SCR}
v_lshlrev_b32 v{V_SCA}, 5, v{V_LANE}
v_add_u32 v{V_SCA}, s{S_T0}, v{V_SCA}
v_xor_b32 v{V_SCB}, {16*32 + 2048}, v{V_SCA}
s_lshl_b32 s{S_T0}, s{S_WAVE}, 9
s_add_u32 s{S_T0}, s{S_T0}, {SCR}
v_lshlrev_b32 v{V_RED}, 3, v{V_LANE}
v_add_u32 v{V_RED}, s{S_T0}, v{V_RED}''')
    paths = [Path('k', False, 'e1', 8192, 128), Path('v', True, 'e1', 8192, 128), Path('bq', False, 'bq', 3072, 128), Path('bkv', True, 'bkv', 3072, 64)]
    stamp_init(a, 0, 100)
    a(f'''
s_waitcnt lgkmcnt(0)
s_mov_b64 s[{SRD_WS}:{SRD_WS+1}], s[{S_WS}:{S_WS+1}]
''')
    stamp(a, 0, 100, 30); stamp_rt(a, 0, 62, 30)
    a(f'''
s_cmp_ge_u32 s{S_SLOT}, 28
s_cbranch_scc1 L_k1_p_bkv
s_cmp_ge_u32 s{S_SLOT}, 26
s_cbranch_scc1 L_k1_p_bq
s_cmp_ge_u32 s{S_SLOT}, 13
s_cbranch_scc1 L_k1_p_v
''')
    for P, (wreg, areg, s0, mul, col0, delta) in zip(paths, [(S_WUK, S_CKV, 0, 5, 0, 0), (S_WUV, S_CKV, 13, 5, 0, 0), (S_WQKV, S_X, 26, 4, 0, 0), (S_WQKV, S_X, 28, 4, 1024, 1024 - 64)]):
        P.late_init = late; P.bkv_init = bkv_init
        P.tail = 'end2' if P.epi == 'e1' else 'xtail'
        a(f'L_k1_p_{P.name}:')
        a(f'''
s_mov_b64 s[{SRD_A}:{SRD_A+1}], s[{areg}:{areg+1}]
s_mov_b64 s[{SRD_W}:{SRD_W+1}], s[{wreg}:{wreg+1}]
s_mov_b32 s{SRD_W+2}, {P.stride*512}
s_sub_u32 s{S_T0}, s{S_SLOT}, {s0}
s_mul_i32 s{S_G0}, s{S_T0}, {mul}
s_mul_i32 s{S_T1}, s{S_G0}, {P.gcol}
s_add_u32 s{S_T1}, s{S_T1}, {col0}
s_mul_i32 s{S_COL}, s{S_WAVE}, {8*P.stride}
s_add_u32 s{S_COL}, s{S_COL}, s{S_T1}
v_mul_u32_u24 v{V_W}, {P.stride}, v{V_T}
v_add_u32 v{V_W}, v{V_W}, v{V_T+2}
''')
        if delta: a(f'v_mul_u32_u24 v{V_T+3}, {delta}, v{V_T+3}\nv_add_u32 v{V_W}, v{V_W}, v{V_T+3}')
        if P.epi == 'e1': a(f's_cmp_eq_u32 s{S_T0}, 12\ns_cselect_b32 s{S_NG}, 4, 5')
        P.colreg = S_T1
        a.add(rot_setup(P))
        a.add(gen_path(P))
    a('L_k1_xtail:')
    a(f'''
v_lshlrev_b32 v{V_T}, 4, v{V_LANE}
s_add_u32 s{S_T0}, s{S_AOFF}, {XF_BASE}
''')
    segs = [(26, [1, 3]), (27, [3, 5]), (28, [0]), (29, [0]), (30, [0]), (31, [0])]
    for sl, blks in segs:
        a(f's_cmp_lg_u32 s{S_SLOT}, {sl}')
        a(f's_cbranch_scc1 L_k1_xs{sl}')
        for ks in [4 * b + i for b in blks for i in range(4)]:
            if ks % 4 == 0: a(f's_add_u32 s{S_T1}, s{S_ROT}, {ks//4}\ns_and_b32 s{S_T1}, s{S_T1}, 7\ns_lshl_b32 s{S_T1}, s{S_T1}, 12\ns_add_u32 s{S_T1}, s{S_T1}, s{S_T0}')
            a(f'buffer_store_dwordx4 {vr(V_A+4*ks,4)}, v{V_T}, s[{SRD_WS}:{SRD_WS+3}], s{S_T1} offen offset:{(ks&3)*1024}')
        a(f'L_k1_xs{sl}:')
    a(f's_cmp_lg_u32 s{S_SLOT}, 26')
    a('s_cbranch_scc1 L_k1_end2')
    seq = L(f'''v_lshrrev_b32 v{V_T}, 5, v{V_LANE}
v_lshlrev_b32 v{V_T}, 4, v{V_T}
s_add_u32 s{S_T0}, s{S_W4}, {SCR}
v_add_u32 v{V_T}, s{S_T0}, v{V_T}''')
    grd = lambda ks: I(f'ds_read_b128 {vr(28+4*(ks%8),4)}, v{V_T} offset:{ks*32}')
    seq += [grd(ks) for ks in range(7)]
    for ks in range(32):
        if ks + 7 < 32: seq.append(grd(ks + 7))
        seq.append(mfma(V_X, 28 + 4 * (ks % 8), V_A + 4 * ks, False, ks == 0))
    seq += [I('s_nop 7'), I('s_nop 4'),
            I(f'v_mul_f32 v{V_X}, s{S_L2E}, v{V_X}'),
            I(f'v_exp_f32 v{V_X}, -v{V_X}'),
            I('s_nop 0'),
            I(f'v_add_f32 v{V_X}, 1.0, v{V_X}'),
            I(f'v_rcp_f32 v{V_X}, v{V_X}'),
            I(f'v_and_b32 v{V_T}, 31, v{V_LANE}'),
            I(f'v_lshlrev_b32 v{V_T}, 2, v{V_T}'),
            I(f's_lshr_b32 s{S_T0}, s{S_AOFF}, 8'),
            I(f's_add_u32 s{S_T0}, s{S_T0}, {G_BASE}'),
            I(f'buffer_store_dword v{V_X}, v{V_T}, s[{SRD_WS}:{SRD_WS+3}], s{S_T0} offen')]
    seq, _, _ = auto_waits(seq)
    a.add(seq)
    a('L_k1_end2:')
    if STAMP:
        stamp(a, 0, 100, 30)
        a('s_waitcnt vmcnt(0)'); stamp(a, 0, 100, 30); stamp_rt(a, 0, 63, 30); stamp_store(a, 0, V_T, V_LANE, SRD_WS, S_WAVE, 30, 0)
    a('L_k1_end:')
    a('s_waitcnt vmcnt(0)')
    a('s_endpgm')
    return a

K1_DESC = '''
.amdhsa_kernel proj_kernel
  .amdhsa_next_free_vgpr 256
  .amdhsa_next_free_sgpr 102
  .amdhsa_accum_offset 256
  .amdhsa_group_segment_fixed_size 0
  .amdhsa_kernarg_size 104
  .amdhsa_user_sgpr_count 2
  .amdhsa_user_sgpr_kernarg_segment_ptr 1
  .amdhsa_system_sgpr_workgroup_id_x 1
.end_amdhsa_kernel
'''
```

```python
from core import *
from layout import *
import os

PD = int(os.environ.get('K2_PD', '6'))
NF = 8
THR = 16777216.0
NEGBIG = -1.0e30

S_WS = 4
SRD_WS, SRD_NUL = 8, 12
S_WAVE, S_H, S_I, S_R, S_CNT, S_T, S_TL, S_STG, S_LSTG, S_LOFF, S_T0, S_T1, S_G0, S_LP, S_THR = 16, 17, 18, 19, 20, 21, 22, 23, 24, 25, 26, 27, 28, 29, 32
S_RET = 34
S_HB = 36
S_MASK = 40
S_SRDL = 72
SRD_WQ = 76
S_ROT, S_QSC, S_W4 = 37, 38, 39
S_WE, S_XE = 80, 88
V_LANE, V_L16, V_CUR, V_NXT, V_L, V_LP, V_G, V_NEG, V_MX, V_MY, V_F = 1, 2, 3, 4, 5, 6, 8, 9, 10, 11, 12
V_E = 16
V_WA, V_TR = 24, 25
V_QA, V_WB = 128, 192
XSLOT = [32, 48, 232]
QSP = int(os.environ.get('K2_QSP', '10'))
RM = [int(x) for x in os.environ.get('K2_RM', '0,1').split(',')]
V_Q, V_O, V_S, V_NM, V_P, V_FB = 32, 64, 128, 160, 176, 192

def MF(d, a, b, c): return I(f'v_mfma_f32_32x32x16_bf16 {vr(d,16)}, {vr(a,4)}, {vr(b,4)}, {c}')
def rd(buf, addr, off): return I(f'ds_read_b128 {vr(V_FB + 4*buf, 4)}, v{addr} offset:{off}')

def sm_ops(par):
    sx, px = V_S + 16 * par, V_P + 8 * par
    ln, lo = V_LP + par, V_LP + 1 - par
    e = lambda i: V_E + (i % 8)
    ops = []
    for i in range(18):
        if i < 16: ops.append((I(f'v_exp_f32 v{e(i)}, v{sx+i}'), 8))
        if 1 <= i <= 16:
            j = i - 1
            ops.append((I(f'v_add_f32 v{ln}, v{lo if j == 0 else ln}, v{e(j)}'), 4))
        if i >= 2 and i % 2 == 0:
            j = i - 2
            ops.append((I(f'v_cvt_pk_bf16_f32 v{px + j//2}, v{e(j)}, v{e(j+1)}'), int(os.environ.get('K2_CVTC','4'))))
    ops.append((I(f'v_cmp_nle_f32 vcc, v{ln}, v{V_THR}'), 4))
    return ops

def fix_trans(seq):
    out = []
    for x in seq:
        if out and out[-1].kind == 'trans' and x.kind == 'valu' and ({w for w in out[-1].w} & x.r): out.append(I('s_nop 0'))
        out.append(x)
    return out

def sm_fill(par):
    return fix_trans([x for x, c in sm_ops(par)])

_uid = [0]
_stubs = []
def sm_check(par):
    _uid[0] += 1
    u = _uid[0]
    _stubs.append((u, par))
    return [I(f's_cbranch_vccnz L_k2_stub{u}'), I(f'L_k2_back{u}:')]
V_THR = V_NEG + 4

def frag_list(par):
    k = [16384 + par * 8192 + ks * 1024 for ks in range(8)]
    v = [par * 8192 + dt * 2048 + k2 * 1024 for k2 in range(2) for dt in range(4)]
    return k + v

CAP = int(os.environ.get('K2_CAP', '24'))
def step_body(g0):
    seq = []
    entry = [rd(n % NF, V_CUR, frag_list(0)[n]) for n in range(PD)]
    R = 'a' if g0 else 'b'
    for par in range(2):
        fl = frag_list(par); nl = frag_list(1 - par)
        ops = sm_ops(1 - par)
        extra = {}
        post = {}
        if par == 1:
            gsw = 16 - PD
            extra[gsw] = [(I(f'v_add_u32 v{V_CUR}, s{S_STG}, v{V_L16}'), 4)]
            post[gsw + 1] = [(I(f's_add_u32 s{S_STG}, s{S_STG}, 32768'), 4)]
            post[gsw + 2] = [(I(f's_cmp_eq_u32 s{S_STG}, 163840'), 4)]
            post[gsw + 3] = [(I(f's_cselect_b32 s{S_STG}, 0, s{S_STG}'), 4)]
        if not (par == 1 and g0):
            post[14] = post.get(14, []) + [(I(f's_sub_u32 s{S_CNT}, s{S_CNT}, 1'), 4)]
        body = [I(f's_cbranch_scc1 L_k2_tail{par}')]
        k = 0
        for n in range(16):
            g = par * 16 + n
            cost = 0
            if n % 2 == 0:
                body.append(I(f's_waitcnt lgkmcnt({PD - 2})'))
            else: cost += 4
            buf = V_FB + 4 * (g % NF)
            if n < 8:
                sd = V_S + 16 * par
                body.append(MF(sd, buf, V_Q + 4 * n, vr(V_NM, 16) if n == 0 else vr(sd, 16)))
            else:
                k2, dt = (n - 8) >> 2, (n - 8) & 3
                body.append(MF(V_O + 16 * dt, buf, V_P + 8 * par + 4 * k2, vr(V_O + 16 * dt, 16)))
            for x, c in extra.get(n, []): body.append(x); cost += c
            m = n + PD
            body.append(rd((g + PD) % NF, V_CUR, fl[m] if m < 16 else nl[m - 16])); cost += 4
            for x, c in post.get(n, []): body.append(x); cost += c
            cap = CAP - (8 if n == 15 else 0)
            if n % 2 == 1: cap -= 0
            while k < len(ops) and (cost + ops[k][1] <= cap or n == 15):
                body.append(ops[k][0]); cost += ops[k][1]; k += 1
        body = fix_trans(body)
        body += sm_check(1 - par)
        seq += body
    chk, lg, _ = auto_waits(seq, lg=list(entry))
    assert len(chk) == len(seq), 'explicit waits insufficient'
    assert [x.w for x in lg] == [x.w for x in entry], ([x.text for x in lg])
    return seq, entry

def pv_only(par, addr, off, fill=None):
    offs = [off + dt * 2048 + k2 * 1024 for k2 in range(2) for dt in range(4)]
    pre = [rd(n, addr, offs[n]) for n in range(8)]
    slots = []
    for n in range(8):
        k2, dt = n >> 2, n & 3
        slots.append([MF(V_O + 16 * dt, V_FB + 4 * n, V_P + 8 * par + 4 * k2, vr(V_O + 16 * dt, 16))])
    if fill:
        nh = min(len(fill), 20)
        seq = pre + fill[:nh] + interleave(slots, fill[nh:], 0, 8)
    else:
        seq = pre + [x for s in slots for x in s]
    seq, lg, _ = auto_waits(seq)
    assert not lg
    return seq

def mask_fill(sx):
    return [I(f'v_cndmask_b32 v{sx+i}, v{sx+i}, v{V_NEG}, s[{S_MASK+2*i}:{S_MASK+2*i+1}]') for i in range(16)]

def rowmax(sx):
    f = [I(f'v_max3_f32 v{V_MX}, v{sx}, v{sx+1}, v{sx+2}')]
    for i in range(3, 15, 2):
        f.append(I(f'v_max3_f32 v{V_MX}, v{V_MX}, v{sx+i}, v{sx+i+1}'))
    f.append(I(f'v_max_f32 v{V_MX}, v{V_MX}, v{sx+15}'))
    f.append(I(f'v_mov_b32 v{V_MY}, v{V_MX}'))
    f.append(I('s_nop 1'))
    f.append(I(f'v_permlane32_swap_b32 v{V_MX}, v{V_MY}'))
    f.append(I(f'v_max_f32 v{V_MX}, v{V_MX}, v{V_MY}'))
    return f

def loader_list(tag=None):
    t = Asm(); loader_block(t)
    for x in t.ins:
        if x.kind == 'dma': x.tag = tag
    return t.ins

def qproj(g0):
    def wd(e):
        o = []
        for i in range(2):
            o.append(I(f's_add_u32 m0, s{S_W4}, {e*16384 + i*1024}'))
            o.append(I(f's_add_u32 s{S_T0}, s{S_WE+e}, {i*4*8192}'))
            d = I(f'buffer_load_dwordx4 v{V_WA}, s[{SRD_WQ}:{SRD_WQ+3}], s{S_T0} offen lds'); d.tag = f'w{e}'
            o.append([o.pop(-2), o.pop(-1), d])
        return o
    def xd(e):
        return [I(f'buffer_load_dwordx4 {vr(XSLOT[e%3] + 4*s, 4)}, v{V_L16}, s[{SRD_WS}:{SRD_WS+3}], s{S_XE+e} offen offset:{s*1024}') for s in range(4)]
    flat = lambda l: [y for x in l for y in (x if isinstance(x, list) else [x])]
    pre1 = flat(wd(0) + xd(0))
    pre2 = flat(wd(1) + xd(1))
    seq = []
    NB = 5
    units = [(e, s_, p_) for e in range(7) for s_ in range(4) for p_ in range(2)] + [(7, s_, p_) for p_ in range(2) for s_ in range(4)]
    def urd(u):
        e, s_, p_ = units[u]
        buf = V_WB + 8 * (u % NB)
        off = (e % 4) * 16384 + s_ * 4096
        o = []
        if e == 4 and s_ == 0: o += [I(f'v_add_u32 v{V_TR+2*p_+t}, 65536, v{V_TR+2*p_+t}') for t in range(2)]
        return o + [I(f'ds_read_b64_tr_b16 {vr(buf + 4*t + 2*j, 2)}, v{V_TR+2*p_+t} offset:{off + j*1024}') for t in range(2) for j in range(2)]
    for e in range(8):
        seq.append(Pseudo('WAITVM', f'w{min(e + 1, 7)}' if e else 'w0'))
        seq.append(I('s_barrier'))
        if STAMP and e in (0, 4):
            t = Asm(); stamp(t, 0, 100, 30); seq += t.ins
        if e <= 1: seq += urd(8 * e) + urd(8 * e + 1)
        slots = []
        for uu in range(8):
            u = 8 * e + uu
            _, s_, p_ = units[u]
            buf = V_WB + 8 * (u % NB)
            xb = XSLOT[e % 3] + 4 * s_
            first = (e == 0 and s_ == 0)
            s0 = []
            if u + 2 < 64 and u + 2 not in (8, 9): s0 += urd(u + 2)
            for t in range(2):
                acc = V_QA + 16 * (2 * p_ + t)
                s0.append(MF(acc, buf + 4 * t, xb, '0' if first else vr(acc, 16)))
                slots.append(s0); s0 = []
        nx = []
        if e == 0: nx += wd(2)
        elif e <= 4: nx += wd(e + 3)
        if e + 2 < 8: nx += xd(e + 2)
        if e == 0: nx += wd(3)
        if g0:
            if e == 5:
                k0 = [I(f's_add_u32 m0, s{S_W4}, s{S_W4}'), I(f's_add_u32 m0, m0, {4*32768 + 16384}'), I(f's_lshl_b32 s{S_T0}, s{S_WAVE}, 12'), I(f's_add_u32 s{S_T0}, s{S_T0}, s{S_HB}')]
                for i in range(4):
                    d = I(f'buffer_load_dwordx4 v{V_L16}, s[{SRD_WS}:{SRD_WS+3}], s{S_T0} offen offset:{i*1024} lds'); d.tag = 'k0'
                    k0.append(d)
                nx.append(k0)
            if e >= 5: nx.append(loader_list('pk'))
        if e == 7:
            cv = [I(f'v_cvt_pk_bf16_f32 v{V_Q+i}, v{V_QA+2*i}, v{V_QA+2*i+1}') for i in range(16)]
            for k_, c_ in enumerate(cv): slots[11 + k_ * 5 // 16].append(c_)
        seq += interleave(slots, nx, 0, QSP) if nx else flat(slots)
    if g0: seq.append(Pseudo('WAITVM', 'k0'))
    seq.append(I('s_barrier'))
    if g0: seq += loader_list('pk')
    return pre1, pre2, seq

def loader_block(a):
    a(f'''
s_cmp_le_u32 s{S_LP}, s{S_TL}
s_cselect_b32 s{S_SRDL+2}, s{SRD_WS+2}, 0
s_lshl_b32 s{S_T0}, s{S_WAVE}, 13
s_add_u32 m0, s{S_LSTG}, s{S_T0}
s_add_u32 s{S_T1}, s{S_LOFF}, 4096
buffer_load_dwordx4 v{V_L16}, s[{S_SRDL}:{S_SRDL+3}], s{S_LOFF} offen lds
buffer_load_dwordx4 v{V_L16}, s[{S_SRDL}:{S_SRDL+3}], s{S_LOFF} offen offset:1024 lds
buffer_load_dwordx4 v{V_L16}, s[{S_SRDL}:{S_SRDL+3}], s{S_LOFF} offen offset:2048 lds
buffer_load_dwordx4 v{V_L16}, s[{S_SRDL}:{S_SRDL+3}], s{S_LOFF} offen offset:3072 lds
s_add_u32 m0, m0, 4096
s_add_u32 s{S_LOFF}, s{S_LOFF}, 32768
buffer_load_dwordx4 v{V_L16}, s[{S_SRDL}:{S_SRDL+3}], s{S_T1} offen lds
buffer_load_dwordx4 v{V_L16}, s[{S_SRDL}:{S_SRDL+3}], s{S_T1} offen offset:1024 lds
buffer_load_dwordx4 v{V_L16}, s[{S_SRDL}:{S_SRDL+3}], s{S_T1} offen offset:2048 lds
buffer_load_dwordx4 v{V_L16}, s[{S_SRDL}:{S_SRDL+3}], s{S_T1} offen offset:3072 lds
s_add_u32 s{S_LP}, s{S_LP}, 1
s_add_u32 s{S_LSTG}, s{S_LSTG}, 32768
s_cmp_eq_u32 s{S_LSTG}, 163840
s_cselect_b32 s{S_LSTG}, 0, s{S_LSTG}
''')

def step_boundary(a):
    _uid[0] += 1; u = _uid[0]
    a(f'''
s_cmp_eq_u32 s{S_G0}, 0
s_cbranch_scc1 L_k2_nb{u}
s_waitcnt vmcnt(16)
s_barrier
''')
    loader_block(a)
    a(f'''
s_branch L_k2_nbd{u}
L_k2_nb{u}:
s_barrier
L_k2_nbd{u}:
''')

def gen_k2():
    a = Asm()
    ST = lambda: stamp(a, 0, 100, 30)
    a(f'''
.p2align 8
.globl attn_kernel
.type attn_kernel,@function
attn_kernel:
s_cmp_ge_u32 s2, 256
s_cbranch_scc1 L_k2_end
s_load_dwordx2 s[4:5], s[0:1], 96
s_load_dwordx2 s[{SRD_WQ}:{SRD_WQ+1}], s[0:1], 16
v_and_b32 v{V_LANE}, 63, v0
v_lshrrev_b32 v{V_E}, 6, v0
v_lshlrev_b32 v{V_L16}, 4, v{V_LANE}
v_readfirstlane_b32 s{S_WAVE}, v{V_E}
s_and_b32 s{S_T0}, s2, 7
s_lshr_b32 s{S_T1}, s2, 3
s_and_b32 s{S_H}, s{S_T1}, 3
s_mul_i32 s{S_ROT}, s{S_H}, {RM[0]}
s_lshl_b32 s{S_T0}, s{S_T0}, 2
s_add_u32 s{S_H}, s{S_H}, s{S_T0}
s_lshr_b32 s{S_I}, s{S_T1}, 2
s_lshl_b32 s{S_T0}, s{S_I}, 2
s_add_u32 s{S_R}, s{S_T0}, s{S_WAVE}
s_sub_u32 s{S_T1}, 67, s{S_R}
s_cmp_lt_u32 s{S_WAVE}, 4
s_cselect_b32 s{S_R}, s{S_R}, s{S_T1}
s_cselect_b32 s{S_G0}, 1, 0
s_lshl_b32 s{S_T0}, s{S_I}, 1
s_sub_u32 s{S_TL}, 31, s{S_T0}
s_lshl_b32 s{S_HB}, s{S_H}, 20
s_waitcnt lgkmcnt(0)
s_mov_b64 s[{SRD_WS}:{SRD_WS+1}], s[4:5]
s_mov_b32 s{SRD_WS+2}, {WS_SIZE}
s_mov_b32 s{SRD_WS+3}, 0x20000
s_mov_b64 s[{S_SRDL}:{S_SRDL+1}], s[4:5]
s_mov_b32 s{S_SRDL+2}, {WS_SIZE}
s_mov_b32 s{S_SRDL+3}, 0x20000
''')
    stamp_init(a, 0, 100); ST(); stamp_rt(a, 0, 62, 30)
    def chunk_setup(e):
        return f'''s_add_u32 s{S_T0}, s{S_ROT}, {e}
s_and_b32 s{S_T0}, s{S_T0}, 7
s_lshl_b32 s{S_WE+e}, s{S_T0}, 19
s_add_u32 s{S_WE+e}, s{S_WE+e}, s{S_LP}
s_lshl_b32 s{S_T0}, s{S_T0}, 12
s_add_u32 s{S_XE+e}, s{S_T0}, s{S_LSTG}
'''
    a(f'''
s_mul_i32 s{S_T0}, s{S_I}, {RM[1]}
s_add_u32 s{S_ROT}, s{S_ROT}, s{S_T0}
s_mov_b32 s{SRD_WQ+2}, {512*8192}
s_mov_b32 s{SRD_WQ+3}, 0x20000
s_lshl_b32 s{S_W4}, s{S_WAVE}, 11
s_lshl_b32 s{S_LP}, s{S_WAVE}, 16
s_lshl_b32 s{S_T0}, s{S_H}, 8
s_add_u32 s{S_LP}, s{S_LP}, s{S_T0}
s_lshl_b32 s{S_LSTG}, s{S_R}, 15
s_add_u32 s{S_LSTG}, s{S_LSTG}, {XF_BASE}
v_lshrrev_b32 v{V_E}, 4, v{V_LANE}
v_lshlrev_b32 v{V_E+1}, 2, v{V_E}
v_and_b32 v{V_E+2}, 15, v{V_LANE}
v_xor_b32 v{V_E+2}, v{V_E+2}, v{V_E+1}
v_lshlrev_b32 v{V_E+2}, 4, v{V_E+2}
v_lshl_add_u32 v{V_WA}, v{V_E}, 13, v{V_E+2}
''')
    a(chunk_setup(0))
    pre1, pre2, q0 = qproj(True)
    _, _, q1 = qproj(False)
    a.add(pre1)
    for e in range(1, 8): a(chunk_setup(e))
    gl = I(f'buffer_load_dword v{V_G}, v{V_E+1}, s[{SRD_WS}:{SRD_WS+3}], s{S_T0} offen')
    a(f'''
v_and_b32 v{V_E}, 31, v{V_LANE}
v_lshlrev_b32 v{V_E+1}, 2, v{V_E}
s_lshl_b32 s{S_T0}, s{S_R}, 7
s_add_u32 s{S_T0}, s{S_T0}, {G_BASE}
''')
    a.add([gl])
    a.add(pre2)
    a(f'''
s_mov_b32 s{S_LP}, 0
s_mov_b32 s{S_LSTG}, 0
s_lshl_b32 s{S_T0}, s{S_WAVE}, 13
s_add_u32 s{S_LOFF}, s{S_HB}, s{S_T0}
s_add_u32 s{S_LOFF}, s{S_LOFF}, 16384
v_lshrrev_b32 v{V_E+1}, 5, v{V_LANE}
v_bfe_u32 v{V_E+2}, v{V_LANE}, 2, 2
v_lshl_add_u32 v{V_E+3}, v{V_E+1}, 3, v{V_E+2}
v_lshlrev_b32 v{V_E+3}, 8, v{V_E+3}
v_lshl_add_u32 v{V_E+3}, v{V_E+2}, 6, v{V_E+3}
v_bfe_u32 v{V_E+2}, v{V_LANE}, 4, 1
v_lshl_add_u32 v{V_E+3}, v{V_E+2}, 5, v{V_E+3}
v_and_b32 v{V_E+2}, 3, v{V_LANE}
v_lshl_add_u32 v{V_TR}, v{V_E+2}, 3, v{V_E+3}
v_xor_b32 v{V_TR+1}, 64, v{V_TR}
v_xor_b32 v{V_TR+2}, 128, v{V_TR}
v_xor_b32 v{V_TR+3}, 192, v{V_TR}
v_lshlrev_b32 v{V_E+1}, 2, v{V_E+1}
v_sub_u32 v{V_E}, v{V_E}, v{V_E+1}
v_mov_b32 v{V_NEG}, {f2u(NEGBIG):#x}
v_mov_b32 v{V_THR}, {f2u(THR):#x}
v_mov_b32 v{V_LP+1}, 0
s_mov_b32 s{S_QSC}, {f2u(QSCALE):#x}
''')
    for i in range(16):
        c = (i & 3) + 8 * (i >> 2)
        a(f'v_cmp_gt_i32 s[{S_MASK+2*i}:{S_MASK+2*i+1}], {c}, v{V_E}')
    for i in range(64): a(f'v_mov_b32 v{V_O+i}, 0')
    a(f'''
v_add_u32 v{V_CUR}, {4*32768}, v{V_L16}
s_mov_b32 s{S_STG}, 32768
s_mov_b32 s{S_T}, 0
s_sub_u32 s{S_CNT}, s{S_R}, 1
s_max_i32 s{S_CNT}, s{S_CNT}, 0
s_cmp_eq_u32 s{S_G0}, 0
s_cbranch_scc1 L_k2_q1
''')
    vm0 = [x for x in pre1 + [gl] + pre2 if x.kind in ('vld', 'dma')]
    q0, lg, vm = auto_waits(q0, vm=vm0)
    assert not lg and [x.tag for x in vm][-16:] == ['pk'] * 16
    a.add(q0)
    a('s_branch L_k2_qd')
    a('L_k2_q1:')
    q1, lg, vm = auto_waits(q1, vm=vm0)
    assert not lg and not vm, [x.text for x in vm]
    a.add(q1)
    a('L_k2_qd:')
    ST()
    seq = [rd(n, V_CUR, 16384 + n * 1024) for n in range(8)]
    cv = [I(f'v_cvt_pk_bf16_f32 v{V_Q+i}, v{V_QA+2*i}, v{V_QA+2*i+1}') for i in range(16, 32)]
    seq += [I('s_nop 1')] + cv[:4]
    for n in range(8):
        seq.append(MF(V_S, V_FB + 4 * n, V_Q + 4 * n, '0' if n == 0 else vr(V_S, 16)))
        seq.append(rd(n, V_CUR, 16384 + 8192 + n * 1024))
        if n < 3: seq += cv[4 + 4 * n: 8 + 4 * n]
    q1m = [MF(V_S + 16, V_FB + 4 * n, V_Q + 4 * n, '0' if n == 0 else vr(V_S + 16, 16)) for n in range(8)]
    seq += q1m[:2] + [I('s_nop 7'), I('s_nop 1')]
    seq, lg, _ = auto_waits(seq)
    a.add(seq)
    a(f's_cmp_lg_u32 s{S_R}, 0')
    a('s_cbranch_scc1 L_k2_nomask0')
    a.add(mask_fill(V_S))
    a('L_k2_nomask0:')
    fill = rowmax(V_S) + [I(f'v_sub_f32 v{V_S+i}, v{V_S+i}, v{V_MX}') for i in range(16)] + [I(f'v_sub_f32 v{V_NM+i}, 0, v{V_MX}') for i in range(16)]
    seq = interleave([[x] for x in q1m[2:]], fill, 0, 6)
    sm0 = sm_fill(0)
    seq += sm0[:24] + [I(f'v_sub_f32 v{V_S+16+i}, v{V_S+16+i}, v{V_MX}') for i in range(16)] + sm0[24:]
    seq = fix_trans(seq)
    seq, lg, _ = auto_waits(seq, lg=lg)
    assert not lg
    a.add(seq)
    ST()
    a(f'v_mov_b32 v{V_CUR}, v{V_L16}')
    step_boundary(a)
    a(f's_cmp_eq_u32 s{S_R}, 0')
    a('s_cbranch_scc1 L_k2_tailB0')
    body0, entry = step_body(True)
    body1, _ = step_body(False)
    a.add([I(x.text) for x in entry])
    a(f's_cmp_eq_u32 s{S_G0}, 0')
    a('s_cbranch_scc1 L_k2_entb')
    a('s_branch L_k2_bodya')
    a('.p2align 6')
    a('L_k2_stepa:')
    a('s_waitcnt vmcnt(16)')
    a('s_barrier')
    loader_block(a)
    a(f's_add_u32 s{S_T}, s{S_T}, 1')
    a('L_k2_bodya:')
    a(f's_sub_u32 s{S_CNT}, s{S_CNT}, 1')
    a.add(body0)
    a('s_branch L_k2_stepa')
    a('L_k2_entb:')
    if os.environ.get('K2_PRIO'): a('s_setprio 1')
    a(f's_sub_u32 s{S_CNT}, s{S_CNT}, 1')
    a('s_branch L_k2_bodyb')
    a('.p2align 6')
    a('L_k2_stepb:')
    a('s_barrier')
    a('L_k2_bodyb:')
    a.add(body1)
    a('s_branch L_k2_stepb')
    a('L_k2_tail0:')
    a('s_waitcnt lgkmcnt(0)')
    a.add(pv_only(0, V_CUR, 0, mask_fill(V_S + 16) + sm_fill(1)))
    a.add(sm_check(1))
    a(f'v_mov_b32 v{V_L}, v{V_LP+1}')
    a.add(pv_only(1, V_CUR, 8192))
    a('s_branch L_k2_epi')
    a('L_k2_tail1:')
    a('s_waitcnt lgkmcnt(0)')
    a.add(pv_only(1, V_CUR, 8192, mask_fill(V_S) + sm_fill(0)))
    a.add(sm_check(0))
    a(f'v_add_u32 v{V_CUR}, s{S_STG}, v{V_L16}')
    a(f's_add_u32 s{S_T}, s{S_T}, 1')
    step_boundary(a)
    a('L_k2_tailB0:')
    a(f'v_mov_b32 v{V_L}, v{V_LP}')
    a.add(pv_only(0, V_CUR, 0))
    a('L_k2_epi:')
    ST()
    a(f'''
v_mov_b32 v{V_MY}, v{V_L}
s_nop 1
v_permlane32_swap_b32 v{V_L}, v{V_MY}
v_add_f32 v{V_L}, v{V_L}, v{V_MY}
v_rcp_f32 v{V_L}, v{V_L}
s_mul_i32 s{S_T0}, s{S_R}, {288*1024}
s_lshl_b32 s{S_T1}, s{S_H}, 13
s_add_u32 s{S_T0}, s{S_T0}, s{S_T1}
s_add_u32 s{S_T0}, s{S_T0}, {CF_BASE}
s_add_u32 s{S_T1}, s{S_T0}, 4096
v_mul_f32 v{V_F}, v{V_L}, v{V_G}
s_nop 3
''')
    for dt in range(4):
        z = V_O + 16 * dt
        for i in range(8):
            a(f'v_mul_f32 v{z+2*i}, v{V_F}, v{z+2*i}')
            a(f'v_mul_f32 v{z+2*i+1}, v{V_F}, v{z+2*i+1}')
            a(f'v_cvt_pk_bf16_f32 v{z+i}, v{z+2*i}, v{z+2*i+1}')
            if i in (3, 7):
                q = 2 * dt + (i >> 2)
                a(f'buffer_store_dwordx4 {vr(z + (i>>2)*4, 4)}, v{V_L16}, s[{SRD_WS}:{SRD_WS+3}], s{S_T0 if q < 4 else S_T1} offen offset:{(q&3)*1024} {os.environ.get("K2_ST", "")}')
    a(f's_cmp_eq_u32 s{S_G0}, 0')
    a('s_cbranch_scc1 L_k2_fin')
    a('s_nop 1')
    seq = []
    seq.append(I(f'v_lshlrev_b32 v{V_E}, 5, v{V_LANE}'))
    seq.append(I(f's_lshl_b32 s{S_T0}, s{S_H}, 11'))
    seq.append(I(f's_add_u32 s{S_T0}, s{S_T0}, {P_BASE}'))
    for rb in range(8):
        seq.append(I(f'buffer_load_dwordx4 {vr(V_O+8*rb,4)}, v{V_E}, s[{SRD_WS}:{SRD_WS+3}], s{S_T0} offen'))
        seq.append(I(f'buffer_load_dwordx4 {vr(V_O+8*rb+4,4)}, v{V_E}, s[{SRD_WS}:{SRD_WS+3}], s{S_T0} offen offset:16'))
        if rb < 7: seq.append(I(f's_add_u32 s{S_T0}, s{S_T0}, 65536'))
    seq.append(I(f'v_and_b32 v{V_E+1}, 31, v{V_LANE}'))
    seq.append(I(f'v_lshlrev_b32 v{V_E+1}, 2, v{V_E+1}'))
    seq += [I(x) for x in f'''s_lshr_b32 s{S_ROT}, s{S_H}, 3
s_lshl_b32 s{S_ROT}, s{S_ROT}, 20
s_and_b32 s{S_T0}, s{S_H}, 7
s_lshl_b32 s{S_T0}, s{S_T0}, 10
s_add_u32 s{S_ROT}, s{S_ROT}, s{S_T0}
s_add_u32 s{S_ROT}, s{S_ROT}, {QP_BASE + 16384}
s_sub_u32 s{S_CNT}, 63, s{S_R}'''.split('\n')]
    for j, sr_ in enumerate((S_R, S_CNT)):
        seq += [I(x) for x in f'''s_lshr_b32 s{S_T0}, s{sr_}, 1
s_lshl_b32 s{S_T0}, s{S_T0}, 15
s_and_b32 s{S_T1}, s{sr_}, 1
s_lshl_b32 s{S_T1}, s{S_T1}, 13
s_add_u32 s{S_T0}, s{S_T0}, s{S_T1}
s_add_u32 s{S_T0}, s{S_T0}, s{S_ROT}
buffer_load_dwordx4 {vr(V_Q+4*j,4)}, v{V_L16}, s[{SRD_WS}:{SRD_WS+3}], s{S_T0} offen
s_lshl_b32 s{S_T0}, s{sr_}, 7
s_add_u32 s{S_T0}, s{S_T0}, {G_BASE}
buffer_load_dword v{V_E+2+j}, v{V_E+1}, s[{SRD_WS}:{SRD_WS+3}], s{S_T0} offen'''.split('\n')]
    nld = sum(1 for x in seq if x.kind == 'vld')
    oload = seq
    S_PWO, S_PWB, S_SEL0, S_SEL1, S_U, S_SRC, S_DST = 80, 82, 84, 85, 86, 87, 88
    V_UA, V_UB, V_UP = 240, 192, 216
    a(f"""s_cmp_gt_u32 s{S_I}, 5
s_cbranch_scc1 L_k2_norel
s_load_dwordx2 s[{S_PWO}:{S_PWO+1}], s[0:1], 40
s_load_dwordx2 s[{S_PWB}:{S_PWB+1}], s[0:1], 64
s_lshl_b32 s{S_U}, s{S_I}, 5
s_add_u32 s{S_U}, s{S_U}, s{S_H}
s_lshl_b32 s{S_U}, s{S_U}, 2
s_add_u32 s{S_U}, s{S_U}, s{S_WAVE}
s_mul_i32 s{S_U}, s{S_U}, 3
s_mov_b32 s{S_SEL0}, 0x05040100
s_mov_b32 s{S_SEL1}, 0x07060302
v_lshrrev_b32 v{V_UA}, 5, v{V_LANE}
v_and_b32 v{V_UA+1}, 31, v{V_LANE}
v_lshlrev_b32 v{V_UA+1}, 2, v{V_UA+1}
v_lshl_add_u32 v{V_UA}, v{V_UA}, 12, v{V_UA+1}
s_waitcnt lgkmcnt(0)""")
    def fake(n, tag):
        o = []
        for _ in range(n):
            x = I(f'buffer_load_dwordx4 v{V_L16}, s[{S_SRDL}:{S_SRDL+3}], s{S_LOFF} offen lds'); x.tag = tag; o.append(x)
        return o
    vm0 = fake(8, 'p-3') + fake(8, 'p-2') + fake(8, 'p-1') + fake(8, 'st')
    def uload(n):
        o = [I(x) for x in f"""s_lshr_b32 s{S_T0}, s{S_U}, 3
s_and_b32 s{S_T1}, s{S_U}, 7
s_mul_i32 s{S_DST+n}, s{S_T1}, {288*2048}
s_lshl_b32 s{S_SRC}, s{S_T0}, 11
s_add_u32 s{S_DST+n}, s{S_DST+n}, s{S_SRC}
s_add_u32 s{S_DST+n}, s{S_DST+n}, {WF_BASE}
s_cmp_lt_u32 s{S_T0}, 256
s_cselect_b64 s[{SRD_WQ}:{SRD_WQ+1}], s[{S_PWO}:{S_PWO+1}], s[{S_PWB}:{S_PWB+1}]
s_cselect_b32 s{SRD_WQ+2}, 8, 1
s_lshl_b32 s{SRD_WQ+2}, s{SRD_WQ+2}, 19
s_and_b32 s{S_T0}, s{S_T0}, 255
s_lshl_b32 s{S_SRC}, s{S_T0}, 14
s_lshl_b32 s{S_T1}, s{S_T1}, 7
s_add_u32 s{S_SRC}, s{S_SRC}, s{S_T1}
s_add_u32 s{S_T1}, s{S_SRC}, 8192
s_add_u32 s{S_U}, s{S_U}, 1""".split('\n')]
        for j in range(8):
            o.append(I(f'buffer_load_dword v{V_UB+8*n+j}, v{V_UA}, s[{SRD_WQ}:{SRD_WQ+3}], s{S_SRC if j < 4 else S_T1} offen offset:{(j&3)*1024}'))
        return o
    def ustore(n):
        o = []
        for t in range(2):
            for i in range(4):
                o.append(I(f'v_perm_b32 v{V_UP+8*n+4*t+i}, v{V_UB+8*n+2*i+1}, v{V_UB+8*n+2*i}, s{S_SEL1 if t else S_SEL0}'))
            o.append(I(f'buffer_store_dwordx4 {vr(V_UP+8*n+4*t,4)}, v{V_L16}, s[{SRD_WS}:{SRD_WS+3}], s{S_DST+n} offen offset:{t*1024}'))
        return o
    seq = []
    for p in range(7):
        seq.append(I(f's_add_u32 s{S_T}, s{S_T}, 1'))
        seq.append(Pseudo('WAITVM', f'p{p-3}'))
        seq.append(I('s_barrier'))
        seq += loader_list(f'p{p}')
        if p < 3:
            ul = uload(p)
            for x in ul:
                if x.kind == 'vld': x.tag = f'u{p}'
            seq += ul
        elif p < 6: seq += [Pseudo('WAITVM', f'u{p-3}')] + ustore(p - 3)
        if p == 3: seq += [I(x.text) for x in oload]
    seq, _, _ = auto_waits(seq, vm=vm0)
    a.add(seq)
    a(f's_mov_b32 s{S_STG}, 0')
    a('s_branch L_k2_ldloop')
    a('L_k2_norel:')
    a.add(oload)
    a(f's_mov_b32 s{S_STG}, 3')
    a('L_k2_ldloop:')
    a(f's_add_u32 s{S_T}, s{S_T}, 1')
    a(f's_cmp_gt_u32 s{S_T}, s{S_TL}')
    a('s_cbranch_scc1 L_k2_ojob')
    a(f's_cmp_eq_u32 s{S_STG}, 0')
    a('s_cbranch_scc1 L_k2_ldw16')
    a(f's_sub_u32 s{S_STG}, s{S_STG}, 1')
    a(f's_waitcnt vmcnt({16 + 8 + nld})')
    a('s_branch L_k2_ldbar')
    a('L_k2_ldw16:')
    a('s_waitcnt vmcnt(16)')
    a('L_k2_ldbar:')
    a('s_barrier')
    loader_block(a)
    a('s_branch L_k2_ldloop')
    a('L_k2_ojob:')
    ST()
    seq = [I('s_waitcnt vmcnt(0)')]
    for rb in range(1, 8):
        for i in range(8):
            seq.append(I(f'v_add_f32 v{V_O+i}, v{V_O+i}, v{V_O+8*rb+i}'))
    for i in range(4):
        seq.append(I(f'v_cvt_pk_bf16_f32 v{V_Q+8+i}, v{V_O+2*i}, v{V_O+2*i+1}'))
    seq.append(I('s_nop 1'))
    for j in range(2):
        seq.append(MF(V_S + 16 * j, V_Q + 8, V_Q + 4 * j, '0'))
    seq += [I('s_nop 7'), I('s_nop 3')]
    for j, sr_ in enumerate((S_R, S_CNT)):
        z = V_S + 16 * j
        seq += [I(x) for x in f'''v_add_f32 v{z+8}, {f2u(1e-6):#x}, v{z+8}
v_rcp_f32 v{z+8}, v{z+8}
v_sub_f32 v{V_E+2+j}, 1.0, v{V_E+2+j}
v_mul_f32 v{z+8}, v{z+8}, v{V_E+2+j}'''.split('\n')]
        for i in range(8): seq.append(I(f'v_mul_f32 v{z+i}, v{z+8}, v{z+i}'))
        for i in range(4): seq.append(I(f'v_cvt_pk_bf16_f32 v{z+i}, v{z+2*i}, v{z+2*i+1}'))
        seq += [I(x) for x in f'''s_mul_i32 s{S_T0}, s{sr_}, {288*1024}
s_lshl_b32 s{S_T1}, s{S_H}, 10
s_add_u32 s{S_T0}, s{S_T0}, s{S_T1}
s_add_u32 s{S_T0}, s{S_T0}, {CF_BASE + 256*1024}
buffer_store_dwordx4 {vr(z,4)}, v{V_L16}, s[{SRD_WS}:{SRD_WS+3}], s{S_T0} offen'''.split('\n')]
    seq, _, _ = auto_waits(seq)
    a.add(seq)
    a('L_k2_fin:')
    if STAMP:
        a('s_waitcnt vmcnt(0)'); ST(); stamp_rt(a, 0, 63, 30); stamp_store(a, 0, V_E, V_LANE, SRD_WS, S_WAVE, 30, 1)
    a('L_k2_end:')
    a('s_waitcnt vmcnt(0)')
    a('s_endpgm')
    for u, par in _stubs:
        a(f'L_k2_stub{u}:')
        a(f's_call_b64 s[{S_RET}:{S_RET+1}], L_k2_slow{par}')
        a(f's_branch L_k2_back{u}')
    for par in range(2):
        sx, sy = V_S + 16 * par, V_S + 16 * (1 - par)
        lo = V_LP + 1 - par
        a(f'L_k2_slow{par}:')
        a('s_nop 15')
        a(f'v_log_f32 v{V_F}, v{lo}')
        rm = rowmax(sx)
        idx = [i for i, x in enumerate(rm) if x.op == 'v_mov_b32'][0]
        rm.insert(idx, I(f'v_max3_f32 v{V_MX}, v{V_MX}, v{V_F}, 0'))
        a.add(rm)
        a(f'v_exp_f32 v{V_F}, -v{V_MX}')
        for i in range(16):
            a(f'v_sub_f32 v{V_NM+i}, v{V_NM+i}, v{V_MX}')
            a(f'v_sub_f32 v{sx+i}, v{sx+i}, v{V_MX}')
            a(f'v_sub_f32 v{sy+i}, v{sy+i}, v{V_MX}')
        a(f'v_mul_f32 v{lo}, v{lo}, v{V_F}')
        for i in range(64): a(f'v_mul_f32 v{V_O+i}, v{V_O+i}, v{V_F}')
        a.add(sm_fill(par))
        a('s_nop 1')
        a(f's_setpc_b64 s[{S_RET}:{S_RET+1}]')
    return a

K2_DESC = '''
.amdhsa_kernel attn_kernel
  .amdhsa_next_free_vgpr 256
  .amdhsa_next_free_sgpr 102
  .amdhsa_accum_offset 256
  .amdhsa_group_segment_fixed_size 0
  .amdhsa_kernarg_size 104
  .amdhsa_user_sgpr_count 2
  .amdhsa_user_sgpr_kernarg_segment_ptr 1
  .amdhsa_system_sgpr_workgroup_id_x 1
.end_amdhsa_kernel
'''
```

```python
from core import *
from layout import *
import os

D = int(os.environ.get('K3_D', '10'))
NK = 36

SRD_WS, SRD_OUT = 8, 20
S_WAVE, S_QT, S_MT, S_T0, S_T1, S_B0, S_B1, S_A, S_LB = 24, 25, 26, 27, 28, 29, 32, 33, 34
V_LANE, V_L16, V_T = 1, 2, 8
V_ACC = 16
V_B = 80
assert V_B + 16 * D <= 256

def MF(d, a, b, c): return I(f'v_mfma_f32_32x32x16_bf16 {vr(d,16)}, {vr(a,4)}, {vr(b,4)}, {c}')

def loads(s):
    o = []
    if s == 32:
        o += [I(f's_mul_i32 s{S_T0}, s{S_WAVE}, {28*1024}'),
              I(f's_sub_u32 s{S_T0}, {224*1024}, s{S_T0}'),
              I(f's_add_u32 s{S_B0}, s{S_B0}, s{S_T0}'),
              I(f's_add_u32 s{S_B1}, s{S_B1}, s{S_T0}'),
              I(f's_add_u32 s{S_A}, s{S_A}, s{S_T0}'),
              I(f's_add_u32 s{S_A}, s{S_A}, s{S_T0}')]
    b = V_B + 16 * (s % D)
    ao = (s & 1) * 2048
    off = (s & 3) * 1024
    W = f's[{SRD_WS}:{SRD_WS+3}]'
    o += [I(f'buffer_load_dwordx4 {vr(b,4)}, v{V_L16}, {W}, s{S_A} offen offset:{ao}'),
          I(f'buffer_load_dwordx4 {vr(b+8,4)}, v{V_L16}, {W}, s{S_B0} offen offset:{off}'),
          I(f'buffer_load_dwordx4 {vr(b+4,4)}, v{V_L16}, {W}, s{S_A} offen offset:{ao+1024}'),
          I(f'buffer_load_dwordx4 {vr(b+12,4)}, v{V_L16}, {W}, s{S_B1} offen offset:{off}')]
    if s & 1: o.append(I(f's_add_u32 s{S_A}, s{S_A}, 4096'))
    if (s & 3) == 3:
        o.append(I(f's_add_u32 s{S_B0}, s{S_B0}, 4096'))
        o.append(I(f's_add_u32 s{S_B1}, s{S_B1}, 4096'))
    return o

def gen_k3():
    a = Asm()
    ST = lambda: stamp(a, 0, 100, 30)
    a(f'''
.p2align 8
.globl outp_kernel
.type outp_kernel,@function
outp_kernel:
s_cmp_ge_u32 s2, 256
s_cbranch_scc1 L_k3_end
s_load_dwordx2 s[{SRD_OUT}:{SRD_OUT+1}], s[0:1], 80
s_load_dwordx2 s[{SRD_WS}:{SRD_WS+1}], s[0:1], 96
v_and_b32 v{V_LANE}, 63, v0
v_lshrrev_b32 v{V_T}, 6, v0
v_lshlrev_b32 v{V_L16}, 4, v{V_LANE}
v_readfirstlane_b32 s{S_WAVE}, v{V_T}
s_and_b32 s{S_T0}, s2, 7
s_lshr_b32 s{S_T1}, s2, 3
s_and_b32 s{S_QT}, s{S_T1}, 3
s_lshl_b32 s{S_T0}, s{S_T0}, 2
s_add_u32 s{S_QT}, s{S_QT}, s{S_T0}
s_lshr_b32 s{S_MT}, s{S_T1}, 2
s_mov_b32 s{SRD_WS+2}, {WS_SIZE}
s_mov_b32 s{SRD_WS+3}, 0x20000
s_mov_b32 s{SRD_OUT+2}, {2048*1024}
s_mov_b32 s{SRD_OUT+3}, 0x20000
s_lshl_b32 s{S_LB}, s{S_WAVE}, 14
s_mul_i32 s{S_A}, s{S_MT}, {288*2048}
s_lshl_b32 s{S_T0}, s{S_WAVE}, 16
s_add_u32 s{S_A}, s{S_A}, s{S_T0}
s_add_u32 s{S_A}, s{S_A}, {WF_BASE}
s_mul_i32 s{S_B0}, s{S_QT}, {2*288*1024}
s_lshl_b32 s{S_T0}, s{S_WAVE}, 15
s_add_u32 s{S_B0}, s{S_B0}, s{S_T0}
s_add_u32 s{S_B0}, s{S_B0}, {CF_BASE}
s_add_u32 s{S_B1}, s{S_B0}, {288*1024}
s_waitcnt lgkmcnt(0)
''')
    stamp_init(a, 0, 100); ST(); stamp_rt(a, 0, 62, 30)
    seq = []
    for s in range(D): seq += loads(s)
    for s in range(NK):
        b = V_B + 16 * (s % D)
        for mt, qt in ((0, 0), (1, 0), (0, 1), (1, 1)):
            acc = V_ACC + 16 * (mt * 2 + qt)
            seq.append(MF(acc, b + 4 * mt, b + 8 + 4 * qt, '0' if s == 0 else vr(acc, 16)))
        if s + D < NK: seq += loads(s + D)
    seq, lg, vm = auto_waits(seq)
    assert not lg and not vm
    a.add(seq)
    ST()
    seq = [I(f'v_lshrrev_b32 v{V_T}, 5, v{V_LANE}'),
           I(f'v_xor_b32 v{V_T}, v{V_T}, v{V_LANE}'),
           I(f'v_lshlrev_b32 v{V_T}, 4, v{V_T}'),
           I(f'v_add_u32 v{V_T}, s{S_LB}, v{V_T}')]
    for o in range(1, 4): seq.append(I(f'v_xor_b32 v{V_T+o}, {o*32}, v{V_T}'))
    seq.append(I('s_nop 3'))
    for t in range(4):
        for jq in range(4):
            seq.append(I(f'ds_write_b128 v{V_T + jq}, {vr(V_ACC + 16*t + 4*jq, 4)} offset:{t*4096 + jq*1024}'))
            if (t * 4 + jq) % 8 == 7: seq.append(Pseudo('WAITLG', None))
    seq += [I(x) for x in f'''v_and_b32 v{V_T}, 7, v{V_LANE}
v_lshrrev_b32 v{V_T+1}, 3, v{V_LANE}
s_and_b32 s{S_T0}, s{S_WAVE}, 3
s_lshl_b32 s{S_T0}, s{S_T0}, 3
v_add_u32 v{V_T+2}, s{S_T0}, v{V_T+1}
v_and_b32 v{V_T+3}, 1, v{V_T}
v_lshl_add_u32 v{V_T+2}, v{V_T+3}, 5, v{V_T+2}
v_xor_b32 v{V_T+2}, v{V_T+2}, v{V_T}
v_lshlrev_b32 v{V_T+2}, 4, v{V_T+2}
v_lshrrev_b32 v{V_T+3}, 1, v{V_T}
v_lshl_add_u32 v{V_T+2}, v{V_T+3}, 10, v{V_T+2}
s_lshr_b32 s{S_T0}, s{S_WAVE}, 2
s_lshl_b32 s{S_T0}, s{S_T0}, 12
v_add_u32 v{V_T+2}, s{S_T0}, v{V_T+2}
v_add_u32 v{V_T+3}, {65536}, v{V_T+2}
v_lshlrev_b32 v{V_T+4}, 4, v{V_T}
v_lshl_add_u32 v{V_T+4}, v{V_T+1}, 10, v{V_T+4}
s_lshl_b32 s{S_T0}, s{S_QT}, 16
s_lshl_b32 s{S_T1}, s{S_WAVE}, 13
s_add_u32 s{S_T0}, s{S_T0}, s{S_T1}
s_lshl_b32 s{S_T1}, s{S_MT}, 7
s_add_u32 s{S_T0}, s{S_T0}, s{S_T1}'''.split('\n')]
    seq.append(Pseudo('WAITLG', None))
    seq.append(I('s_barrier'))
    R = V_B
    rds = []
    for src in range(8):
        ad = V_T + 2 + (src >> 2)
        o = (src & 3) * 16384
        rds.append(I(f'ds_read_b128 {vr(R + 8*src, 4)}, v{ad} offset:{o}'))
        rds.append(I(f'ds_read_b128 {vr(R + 8*src + 4, 4)}, v{ad} offset:{o + 8192}'))
    seq += rds[:12]
    for src in range(1, 8):
        if src in (1, 2): seq += rds[12 + 2*(src-1): 14 + 2*(src-1)]
        for i in range(8):
            seq.append(I(f'v_add_f32 v{R+i}, v{R+i}, v{R+8*src+i}'))
    for i in range(4):
        seq.append(I(f'v_cvt_pk_bf16_f32 v{R+i}, v{R+i}, v{R+4+i}'))
    seq.append(I(f'buffer_store_dwordx4 {vr(R,4)}, v{V_T+4}, s[{SRD_OUT}:{SRD_OUT+3}], s{S_T0} offen'))
    seq, lg, vm = auto_waits(seq)
    a.add(seq)
    if STAMP:
        a('s_waitcnt vmcnt(0)'); ST(); stamp_rt(a, 0, 63, 30); stamp_store(a, 0, V_T, V_LANE, SRD_WS, S_WAVE, 30, 2)
    a('L_k3_end:')
    a('s_waitcnt vmcnt(0)')
    a('s_endpgm')
    return a

K3_LAUNCH = '; @launch kernel=outp_kernel grid=(256,1,1) block=(512,1,1) lds=131072'
K3_DESC = '''
.amdhsa_kernel outp_kernel
  .amdhsa_next_free_vgpr 256
  .amdhsa_next_free_sgpr 102
  .amdhsa_accum_offset 256
  .amdhsa_group_segment_fixed_size 0
  .amdhsa_kernarg_size 104
  .amdhsa_user_sgpr_count 2
  .amdhsa_user_sgpr_kernarg_segment_ptr 1
  .amdhsa_system_sgpr_workgroup_id_x 1
.end_amdhsa_kernel
'''
```
